```python
import torch

def _softmax(x, axis=-1):
    return torch.softmax(x, dim=axis)

def _gelu(x):
    return torch.nn.functional.gelu(x, approximate='tanh')

def _silu(x):
    return torch.nn.functional.silu(x)

def _sigmoid(x):
    return torch.sigmoid(x)

def _layernorm(x, axis=-1, eps=1e-05):
    m = x.mean(dim=axis, keepdim=True)
    v = x.var(dim=axis, keepdim=True, unbiased=False)
    return (x - m) / torch.sqrt(v + eps)

def _scatter_add(tgt, idx, src, axis=0):
    return tgt.clone().index_add_(axis, idx, src)

def _segment_sum(src, seg, n):
    out = torch.zeros((n,) + src.shape[1:], dtype=src.dtype)
    return out.index_add_(0, seg, src)

def _pad(x, pw):
    flat = tuple((v for pair in reversed(pw) for v in pair))
    return torch.nn.functional.pad(x, flat)
kernel_name = 'sequential_preLN__memory_aug_recurrent_mem_tr__glu_gated_glu__prompt'

def setup_inputs():

    _w = lambda a: (lambda t: t.to(torch.bfloat16) if t.is_floating_point() else t)(torch.as_tensor(a))

    def _A_setup():
        B, S, Dm = (1, 2048, 1024)
        H, Dh = (32, 128)
        M, seg = (8, 32)
        seg = min(seg, S)
        S = S // seg * seg
        return {'x': _w((lambda *s: torch.randn(*s, dtype=torch.bfloat16) * 0.05)(B, S, Dm)), 'mem0': _w((lambda *s: torch.randn(*s, dtype=torch.bfloat16) * 0.2)(B, M, Dm)), 'Wq': _w((lambda *s: torch.randn(*s, dtype=torch.bfloat16) * 1.6)(Dm, H, Dh) * Dm ** (-0.5)), 'Wk': _w((lambda *s: torch.randn(*s, dtype=torch.bfloat16) * 1.6)(Dm, H, Dh) * Dm ** (-0.5)), 'Wv': _w((lambda *s: torch.randn(*s, dtype=torch.bfloat16) * 0.2)(Dm, H, Dh) * Dm ** (-0.5)), 'Wo': _w((lambda *s: torch.randn(*s, dtype=torch.bfloat16) * 0.2)(H, Dh, Dm) * (H * Dh) ** (-0.5)), 'seg_len': seg}
    _A_in = _A_setup()

    def _B_setup():
        B, S, D, F = (1, 2048, 1024, 3584)
        return {'x': _w((lambda *s: torch.randn(*s, dtype=torch.bfloat16) * 0.05)(B, S, D)), 'w_gate': _w((lambda *s: torch.randn(*s, dtype=torch.bfloat16) * 0.05)(D, F)), 'w_up': _w((lambda *s: torch.randn(*s, dtype=torch.bfloat16) * 0.05)(D, F)), 'w_down': _w((lambda *s: torch.randn(*s, dtype=torch.bfloat16) * 0.05)(F, D))}
    _B_in = _B_setup()
    return {'A_x': _A_in['x'], 'A_mem0': _A_in['mem0'], 'A_Wq': _A_in['Wq'], 'A_Wk': _A_in['Wk'], 'A_Wv': _A_in['Wv'], 'A_Wo': _A_in['Wo'], 'A_seg_len': _A_in['seg_len'], 'B_x': _B_in['x'], 'B_w_gate': _B_in['w_gate'], 'B_w_up': _B_in['w_up'], 'B_w_down': _B_in['w_down']}

def reference(A_x, A_mem0, A_Wq, A_Wk, A_Wv, A_Wo, A_seg_len, B_x, B_w_gate, B_w_up, B_w_down):

    def _A_ref(x, mem0, Wq, Wk, Wv, Wo, seg_len):
        B, S, Dm = x.shape
        H, Dh = (Wq.shape[1], Wq.shape[2])
        M = mem0.shape[1]
        scale = Dh ** (-0.5)
        n_seg = S // seg_len
        L = M + seg_len
        idx = torch.arange(L)
        mask = (idx[:, None] < M) | (idx[:, None] >= idx[None, :])
        mem = mem0
        outs = []
        for s in range(n_seg):
            xs = x[:, s * seg_len:(s + 1) * seg_len, :].clone()
            h = torch.concatenate([mem, xs], axis=1)
            q = torch.einsum('btd,dhe->bhte', h, Wq)
            k = torch.einsum('btd,dhe->bhte', h, Wk)
            v = torch.einsum('btd,dhe->bhte', h, Wv)
            scores = torch.einsum('bhqe,bhke->bhqk', q, k) * scale
            scores = torch.where(mask[None, None], scores, -1000000000.0)
            p = _softmax(scores, axis=-1)
            o = torch.einsum('bhqk,bhke->bhqe', p, v)
            o = torch.einsum('bhte,hed->btd', o, Wo)
            mem = o[:, :M, :].clone()
            outs.append(o[:, M:, :])
        return torch.concatenate(outs, axis=1)

    def _B_ref(x, w_gate, w_up, w_down):
        g = torch.einsum('bsd,df->bsf', x, w_gate)
        u = torch.einsum('bsd,df->bsf', x, w_up)
        h = _sigmoid(g) * u
        return torch.einsum('bsf,fd->bsd', h, w_down)
    x = A_x
    h = x + _A_ref(_layernorm(x, axis=-1), A_mem0, A_Wq, A_Wk, A_Wv, A_Wo, A_seg_len)
    h2 = h + _B_ref(_layernorm(h, axis=-1), B_w_gate, B_w_up, B_w_down)
    return h2
```

```python
import re

def v(i, n=1):
    return f"v{i}" if n == 1 else f"v[{i}:{i+n-1}]"
def a(i, n=1):
    return f"a{i}" if n == 1 else f"a[{i}:{i+n-1}]"
def s(i, n=1):
    return f"s{i}" if n == 1 else f"s[{i}:{i+n-1}]"

_REG = re.compile(r"^(v|a|s)(?:(\d+)|\[(\d+):(\d+)\])$")

def regs_of(op):
    op = op.strip()
    if op.startswith('-') or op.startswith('|'):
        op = op.strip('-|')
    m = _REG.match(op)
    if m:
        k = m.group(1)
        if m.group(2) is not None:
            return [(k, int(m.group(2)))]
        return [(k, i) for i in range(int(m.group(3)), int(m.group(4)) + 1)]
    if op == 'vcc':
        return [('s', 106), ('s', 107)]
    if op == 'vcc_lo':
        return [('s', 106)]
    if op == 'vcc_hi':
        return [('s', 107)]
    if op == 'exec':
        return [('x', 0), ('x', 1)]
    if op == 'exec_lo':
        return [('x', 0)]
    if op == 'exec_hi':
        return [('x', 1)]
    if op == 'm0':
        return [('m', 0)]
    return []

def split_ops(rest):
    out, depth, cur = [], 0, ''
    for ch in rest:
        if ch == '[':
            depth += 1
        if ch == ']':
            depth -= 1
        if ch == ',' and depth == 0:
            out.append(cur.strip()); cur = ''
        else:
            cur += ch
    if cur.strip():
        out.append(cur.strip())
    return out

TRANS = ('v_exp_f32', 'v_log_f32', 'v_rcp_f32', 'v_rsq_f32', 'v_sqrt_f32', 'v_sin_f32', 'v_cos_f32',
         'v_rcp_iflag_f32', 'v_exp_f16', 'v_rcp_f16')

class I:
    __slots__ = ('text', 'op', 'kind', 'dst', 'src', 'passes', 'dpp', 'nops', 'lds_dma', 'wide_store', 'srcC', 'srcAB', 'label', 'target', 'exec_w')
    def __init__(self, text):
        self.text = text
        self.label = None
        self.target = None
        t = text.split(';')[0].strip()
        self.dst = []; self.src = []; self.passes = 0; self.dpp = False; self.nops = 1
        self.lds_dma = False; self.wide_store = False; self.srcC = []; self.srcAB = []; self.exec_w = False
        if t.endswith(':'):
            self.kind = 'label'; self.label = t[:-1]; self.op = ''; self.nops = 0
            return
        if t.startswith('.') or t == '':
            self.kind = 'dir'; self.op = ''; self.nops = 0
            return
        parts = t.split(None, 1)
        op = parts[0]
        for suf in ('_e32', '_e64', '_dpp', '_sdwa'):
            if op.endswith(suf):
                if suf == '_dpp': self.dpp = True
                op = op[:-len(suf)]
        self.op = op
        rest = parts[1] if len(parts) > 1 else ''
        ops = split_ops(rest)
        mods = ''
        if ops:
            last = ops[-1].split(None, 1)
            if len(last) > 1 and not last[0].endswith(':'):
                ops[-1] = last[0]; mods = last[1]
            elif len(last) == 1 and (':' in last[0] and '[' not in last[0]):
                mods = last[0]; ops = ops[:-1]
        allmods = mods
        if any(k in rest for k in ('quad_perm', 'row_shr', 'row_shl', 'row_ror', 'row_bcast', 'row_mirror', 'row_half_mirror', 'wave_sh', 'wave_ro', 'row_newbcast', 'row_share', 'row_xmask')):
            self.dpp = True
        R = [regs_of(o) for o in ops]
        if op.startswith('v_mfma') or op.startswith('v_smfmac'):
            self.kind = 'mfma'
            if '32x32x16' in op or '32x32x8' in op: self.passes = 8
            elif '16x16x32' in op or '16x16x16' in op or '16x16x64' in op: self.passes = 4
            elif '4x4x4' in op: self.passes = 2
            else: raise Exception('unknown mfma ' + op)
            self.dst = R[0]; self.srcAB = R[1] + R[2]
            if op.startswith('v_smfmac'):
                self.srcC = R[0]; self.srcAB += R[3]
            else:
                self.srcC = R[3]
            self.src = self.srcAB + self.srcC
        elif op.startswith('v_'):
            self.kind = 'valu'
            if op.startswith('v_cmpx'):
                self.dst = [('x', 0), ('x', 1)]; self.src = sum(R[1:] if len(R) > 2 else R, []); self.exec_w = True
            elif op.startswith('v_permlane') and 'swap' in op:
                self.dst = R[0] + R[1]; self.src = R[0] + R[1]
            elif op in ('v_add_co_u32', 'v_sub_co_u32', 'v_addc_co_u32', 'v_subb_co_u32', 'v_subrev_co_u32', 'v_mad_u64_u32', 'v_div_scale_f32'):
                self.dst = R[0] + R[1]; self.src = sum(R[2:], [])
            elif op == 'v_nop':
                pass
            else:
                self.dst = R[0]; self.src = sum(R[1:], [])
                if op.startswith('v_fmac') or op.startswith('v_mac') or op.startswith('v_dot2c') or op.startswith('v_pk_fmac') or op in ('v_writelane_b32',) or self.dpp:
                    self.src = self.src + R[0]
                if op.startswith('v_cndmask') and len(R) == 3:
                    self.src += [('s', 106), ('s', 107)]
                if op.startswith('v_cndmask') and len(ops) == 3:
                    self.src += [('s', 106), ('s', 107)]
                if op.startswith('v_dot'):
                    self.srcC = R[3] if len(R) > 3 else R[0]
                    self.srcAB = R[1] + R[2]
        elif op.startswith('buffer_') or op.startswith('global_') or op.startswith('flat_'):
            self.kind = 'vmem'
            is_lds = bool(re.search(r'\blds\b', rest)) or '_lds_' in op
            if is_lds:
                self.lds_dma = True
                self.src = sum(R, []) + [('m', 0)]
            elif '_load' in op:
                self.dst = R[0]; self.src = sum(R[1:], [])
            elif '_atomic' in op:
                ret = bool(re.search(r'\b(sc0|glc)\b', rest))
                if ret and op.startswith('global_'):
                    self.dst = R[0]; self.src = sum(R[1:], [])
                elif ret:
                    self.dst = R[0]; self.src = sum(R, [])
                else:
                    self.src = sum(R, [])
            else:
                self.src = sum(R, [])
                if 'x3' in op or 'x4' in op:
                    self.wide_store = True
                    self.srcAB = R[0] if op.startswith('buffer_') else R[1]
        elif op.startswith('ds_'):
            self.kind = 'ds'
            if op.startswith('ds_read') or op.startswith('ds_bpermute') or op.startswith('ds_permute') or op.startswith('ds_swizzle') or '_rtn' in op:
                self.dst = R[0]; self.src = sum(R[1:], [])
            else:
                self.src = sum(R, [])
        elif op.startswith('s_'):
            self.kind = 'salu'
            if op == 's_nop':
                self.nops = int(ops[0] if ops else mods, 0) + 1
            elif op.startswith('s_cbranch') or op == 's_branch':
                self.target = (ops[0] if ops else mods)
            elif op.startswith('s_cmp') or op in ('s_waitcnt', 's_barrier', 's_endpgm', 's_setprio', 's_sleep', 's_bitcmp0_b32', 's_bitcmp1_b32', 's_sethalt'):
                self.src = sum(R, [])
            elif op.startswith('s_load') or op.startswith('s_buffer_load') or op.startswith('s_getreg') or op.startswith('s_memtime') or op.startswith('s_memrealtime'):
                self.dst = R[0]; self.src = sum(R[1:], [])
            elif 'saveexec' in op:
                self.dst = R[0] + [('x', 0), ('x', 1)]; self.src = sum(R[1:], [])
            else:
                self.dst = R[0] if R else []; self.src = sum(R[1:], [])
        else:
            raise Exception('unknown instruction: ' + text)

def need(p, c):
    n = 0
    pd = set(p.dst)
    if p.kind == 'valu':
        vd = {r for r in pd if r[0] in 'va'}
        sd = {r for r in pd if r[0] == 's'}
        if c.kind == 'mfma' and vd & set(c.src): n = max(n, 2)
        if c.kind == 'mfma' and p.exec_w: n = max(n, 4)
        if c.kind == 'valu':
            cs = set(c.src)
            if c.dpp and vd & cs: n = max(n, 2)
            if c.op.startswith('v_permlane') and vd & cs: n = max(n, 2)
            if c.op in ('v_readlane_b32', 'v_readfirstlane_b32'):
                if vd & cs: n = max(n, 1)
                if p.exec_w: n = max(n, 4)
            if c.op in ('v_readlane_b32', 'v_writelane_b32') and sd & cs: n = max(n, 4)
            if sd & cs: n = max(n, 2)
            if p.op in TRANS and c.op not in TRANS and vd & cs: n = max(n, 1)
            if p.exec_w and (c.dpp): n = max(n, 5)
            if p.exec_w and c.op.startswith('v_permlane'): n = max(n, 4)
            if ('op_sel' in p.text or 'dst_sel' in p.text) and vd & (cs | set(c.dst)): n = max(n, 1)
        if p.op.startswith('v_dot'):
            if c.op == p.op:
                if vd & set(c.srcAB): n = max(n, 3)
                if (vd & set(c.dst)) and not (vd & set(c.srcC)): n = max(n, 3)
            elif vd & (set(c.src) | set(c.dst)): n = max(n, 3)
        if c.kind == 'vmem' and sd & set(c.src): n = max(n, 5)
        if p.op in TRANS and c.kind in ('vmem', 'ds', 'mfma') and vd & set(c.src): n = max(n, 2)
    if p.kind == 'salu':
        if ('m', 0) in pd and c.kind == 'vmem' and c.lds_dma: n = max(n, 1)
        if (('x', 0) in pd or ('x', 1) in pd):
            if c.kind == 'valu' and c.dpp: n = max(n, 5)
            if c.kind == 'mfma': n = max(n, 4)
            if c.kind == 'valu' and c.op.startswith('v_permlane'): n = max(n, 4)
            if c.kind == 'valu' and c.op in ('v_readlane_b32', 'v_readfirstlane_b32'): n = max(n, 4)
    if p.kind == 'vmem' and p.wide_store:
        if c.kind in ('valu', 'mfma') and set(p.srcAB) & set(c.dst): n = max(n, 2)
        if c.kind in ('vmem', 'ds') and set(p.srcAB) & set(c.dst): n = max(n, 1)
    if p.kind == 'mfma':
        P = p.passes
        tab_c = {2: 4, 4: 6, 8: 10}[P]
        tab_ab = {2: 5, 4: 8, 8: 12}[P]
        tab_war = {2: 1, 4: 3, 8: 7}[P]
        if c.kind == 'mfma':
            if pd & set(c.srcAB): n = max(n, tab_ab)
            ov = pd & set(c.srcC)
            if ov:
                exact = (p.dst == c.srcC) and (p.op == c.op)
                if not exact: n = max(n, tab_c)
                elif P == 2: n = max(n, 2)
            if pd & set(c.dst) and not (pd & set(c.srcC)): n = max(n, tab_c)
        else:
            if pd & (set(c.src) | set(c.dst)): n = max(n, tab_ab)
            if c.kind == 'valu' and set(p.srcC) & set(c.dst): n = max(n, tab_war)
    return n

WIN = 14

class Asm:
    def __init__(self):
        self.lines = []
        self.uid = 0
    def __call__(self, text):
        for ln in text.split('\n'):
            ln = ln.strip()
            if ln:
                self.lines.append(ln)
    def label(self, name):
        self.lines.append(name + ':')
    def newlabel(self, base='L'):
        self.uid += 1
        return f"{base}_{self.uid}"
    def comment(self, t):
        self.lines.append('; ' + t)

    @staticmethod
    def fix(lines):
        ins = []
        for ln in lines:
            if ln.startswith(';'):
                x = I('.c'); x.text = ln; ins.append(x); continue
            ins.append(I(ln))
        out = []
        def dist_need(hist, c):
            d = 0; req = 0
            for p in reversed(hist):
                if p.kind in ('label', 'dir'): continue
                r = need(p, c)
                if r > d: req = max(req, r - d)
                d += p.nops
                if d >= WIN: break
            return req
        for c in ins:
            if c.kind not in ('label', 'dir'):
                r = dist_need(out[-40:], c)
                if r > 0:
                    while r > 0:
                        k = min(r, 16)
                        out.append(I(f"s_nop {k-1}")); r -= k
            out.append(c)
        pos = {x.label: i for i, x in enumerate(out) if x.kind == 'label'}
        problems = []
        for i, x in enumerate(out):
            if x.target is not None and x.target in pos:
                hist = out[max(0, i - 40):i + 1]
                seq = [y for y in out[pos[x.target]:pos[x.target] + 40] if y.kind not in ('label', 'dir')]
                h = list(hist)
                d = 0
                for c in seq:
                    r = dist_need(h, c)
                    if r > 0:
                        problems.append((x.text, c.text, r))
                    h.append(c)
                    d += c.nops
                    if d >= WIN or c.op == 's_branch' or c.op == 's_endpgm': break
        return [x.text for x in out], problems
```

```python
import sys, json
from common import *
from ln import ln_kernel
from gemm import G
from xattn import xattn_kernel

def make_ws():
    ws = WS()
    ws.alloc('xn', (2048, 1024), 'bf16')
    ws.alloc('q', (2048, 4096), 'bf16')
    ws.alloc('k', (2048, 4096), 'bf16')
    ws.alloc('vT', (64, 32, 128, 32), 'bf16')
    ws.alloc('km', (64, 8, 4096), 'bf16')
    ws.alloc('vmT', (64, 32, 128, 8), 'bf16')
    ws.alloc('o', (2048, 4096), 'bf16')
    ws.alloc('h', (2048, 1024), 'bf16')
    ws.alloc('hn', (2048, 1024), 'bf16')
    ws.alloc('act', (2048, 3584), 'bf16')
    ws.alloc('ring', (4, 65536), 'u32')
    return ws

def gemm_kernel(ws, name, BM, BN, kind):
    e = Asm()
    done = name + "_done"
    if kind == 'qkv':
        M, N, K, lda, ldb, nsub = 2048, 12288, 1024, 2048, 8192, 1
    elif kind == 'wo':
        M, N, K, lda, ldb, nsub = 2048, 1024, 4096, 8192, 2048, 1
    elif kind == 'glu':
        M, N, K, lda, ldb, nsub = 2048, 7168, 1024, 2048, 7168, 2
    elif kind == 'down':
        M, N, K, lda, ldb, nsub = 2048, 1024, 3584, 7168, 2048, 1
    g = G(BM, BN, K, lda, ldb, nsub)
    nm, nn = M // BM, N // BN
    ntiles = nm * nn
    e(f"s_cmp_ge_u32 s2, {ntiles}")
    e(f"s_cbranch_scc1 {done}")
    load_ptr(e, 4, 'ws')
    if kind == 'qkv':
        load_ptr(e, 6, 'Wq'); load_ptr(e, 8, 'Wk'); load_ptr(e, 10, 'Wv')
    elif kind == 'wo':
        load_ptr(e, 6, 'Wo'); load_ptr(e, 8, 'x')
    elif kind == 'glu':
        load_ptr(e, 6, 'wg'); load_ptr(e, 8, 'wu')
    elif kind == 'down':
        load_ptr(e, 6, 'wd'); load_ptr(e, 8, 'out')
    assert nm & (nm - 1) == 0
    if nn % 8 == 0:
        per = nn // 8
        e(f"s_and_b32 s12, s2, 7")
        e(f"s_lshr_b32 s13, s2, 3")
        e(f"s_and_b32 s14, s13, {nm-1}")
        e(f"s_lshr_b32 s15, s13, {nm.bit_length()-1}")
        e(f"s_mul_i32 s12, s12, {per}")
        e(f"s_add_u32 s15, s15, s12")
    else:
        e(f"s_and_b32 s14, s2, {nm-1}")
        e(f"s_lshr_b32 s15, s2, {nm.bit_length()-1}")
    g.setup(e)
    e("s_waitcnt lgkmcnt(0)")
    if kind == 'qkv':
        per_mat = 4096 // BN
        e(f"s_lshr_b32 s16, s15, {per_mat.bit_length()-1}")
        e(f"s_and_b32 s15, s15, {per_mat-1}")
        e("s_cmp_eq_u32 s16, 1")
        e("s_cselect_b32 s6, s8, s6"); e("s_cselect_b32 s7, s9, s7")
        e("s_cmp_eq_u32 s16, 2")
        e("s_cselect_b32 s6, s10, s6"); e("s_cselect_b32 s7, s11, s7")
        srd(e, g.sX, 4, ws.size('xn'), ws.o('xn'))
        srd(e, g.sW0, 6, SZ['Wq'])
        assert ws.o('k') == ws.o('q') + ws.size('q') and ws.o('vT') == ws.o('k') + ws.size('k')
        srd(e, g.sC, 4, 3 * ws.size('q'), ws.o('q'))
        ldc = 8192
        e(f"s_mul_i32 {s(g.sKX)}, s14, {BM*lda}")
        e(f"s_mul_i32 {s(g.sKW)}, s15, {BN*2}")
        vl = name + "_v"
        e("s_cmp_eq_u32 s16, 2")
        e(f"s_cbranch_scc1 {vl}")
        e(f"s_mul_i32 {s(g.sCoff)}, s14, {BM*ldc}")
        e(f"s_add_u32 {s(g.sCoff)}, {s(g.sCoff)}, {s(g.sKW)}")
        e(f"s_mul_i32 s16, s16, {ws.size('q')}")
        e(f"s_add_u32 {s(g.sCoff)}, {s(g.sCoff)}, s16")
        g.mainloop(e, name)
        g.epi_store(e, ldc)
        e("s_waitcnt vmcnt(0)")
        e("s_endpgm")
        e.label(vl)
        e(f"s_mul_i32 {s(g.sCoff)}, s14, {(BM//32)*262144}")
        e(f"s_mul_i32 s17, s15, {BN*64}")
        e(f"s_add_u32 {s(g.sCoff)}, {s(g.sCoff)}, s17")
        e(f"s_add_u32 {s(g.sCoff)}, {s(g.sCoff)}, {2*ws.size('q')}")
        g.swap = True
        g.mainloop(e, name + "v")
        g.epi_vt(e)
    elif kind in ('wo', 'down'):
        an = 'o' if kind == 'wo' else 'act'
        srd(e, g.sX, 4, ws.size(an), ws.o(an))
        srd(e, g.sW0, 6, SZ['Wo'] if kind == 'wo' else SZ['wd'])
        if kind == 'wo':
            srd(e, g.sC, 4, ws.size('h'), ws.o('h'))
            srd(e, g.sR, 8, SZ['x'])
        else:
            srd(e, g.sC, 8, SZ['out'])
            srd(e, g.sR, 4, ws.size('h'), ws.o('h'))
        ldc = 2048
        e(f"s_mul_i32 {s(g.sKX)}, s14, {BM*lda}")
        e(f"s_mul_i32 {s(g.sKW)}, s15, {BN*2}")
        e(f"s_mul_i32 {s(g.sCoff)}, s14, {BM*ldc}")
        e(f"s_add_u32 {s(g.sCoff)}, {s(g.sCoff)}, {s(g.sKW)}")
        e(f"s_mov_b32 {s(g.sRoff)}, {s(g.sCoff)}")
        g.mainloop(e, name)
        g.epi_store(e, ldc, resid=True)
    elif kind == 'glu':
        srd(e, g.sX, 4, ws.size('hn'), ws.o('hn'))
        srd(e, g.sW0, 6, SZ['wg'])
        srd(e, g.sW1, 8, SZ['wu'])
        srd(e, g.sC, 4, ws.size('act'), ws.o('act'))
        ldc = 7168
        e(f"s_mul_i32 {s(g.sKX)}, s14, {BM*lda}")
        e(f"s_mul_i32 {s(g.sKW)}, s15, {BN}")
        e(f"s_mul_i32 {s(g.sCoff)}, s14, {BM*ldc}")
        e(f"s_add_u32 {s(g.sCoff)}, {s(g.sCoff)}, {s(g.sKW)}")
        g.mainloop(e, name)
        g.epi_glu(e, ldc)
    e("s_waitcnt vmcnt(0)")
    e.label(done)
    e("s_endpgm")
    return dict(name=name, grid=ntiles, block=256, lds=g.lds, lines=e.lines, vgprs=256, agprs=256)

def make_list(ws, chain=None):
    ks = [ln_kernel('ln1_kernel', ('x', 0), ('ws', ws.o('xn')), ws)]
    ks.append(gemm_kernel(ws, 'qkv_kernel', 256, 256, 'qkv'))
    if chain is not None: ks.append(chain)
    ks.append(xattn_kernel('xattn_kernel', ws))
    ks.append(gemm_kernel(ws, 'wo_kernel', 128, 128, 'wo'))
    ks.append(ln_kernel('ln2_kernel', ('ws', ws.o('h')), ('ws', ws.o('hn')), ws))
    ks.append(gemm_kernel(ws, 'glu_kernel', 256, 256, 'glu'))
    ks.append(gemm_kernel(ws, 'down_kernel', 128, 128, 'down'))
    return ks

if __name__ == '__main__':
    ws = make_ws()
    ks = make_list(ws)
    txt, prob = build(ks, ["; generated baseline"])
    for p in prob: print("EDGE HAZARD:", p)
    open(sys.argv[1], 'w').write(txt)
    json.dump(ws.lay, open('layout.json', 'w'))
```

```python
from common import *
from xattn import C_SCALE, f2u

L_M = 0
L_T = 16384
L_R = 18432
L_ROLE = 24576
L_WV = 32768
LDS_BYTES = 163840

R_RL = 0
R_RR = 32768
R_RS = 65536
R_RO = 196608
SLOT = 262144
OOB = 0x40000000

sWS, sDBG, sWQ, sWK, sWV, sWO, sM0 = 4, 6, 8, 10, 12, 14, 16
sRING, sKV, sKM, sW = 20, 24, 28, 32
sG, sJ, sWAVE, sSTEP, sSLOT, sNEXT, sPOIS, sBUD = 36, 37, 38, 39, 40, 41, 42, 43
sPL, sPR, sSLOT4, sKVO, sKMO, sNR, sLO, sHI, sC, sMODE, sCU, sH = 44, 45, 46, 47, 48, 49, 50, 51, 52, 53, 54, 55
sT = 56
sTM = 64
sACC = 70
sRET = 86
vG, vA, vIDX, vKX, vVX, vTW, vTR, vSW, vSR, vGR, vWV0, vWV1, vOW, vOR, vRW, vRR, vPW, vPO, vKM, vVM, vPF = range(1, 22)
vVMF = 22
vB0 = 24
vX = 32
vF = 48
vPOI = 56
vACCV = 60
vAF = 64
vWO = 128


class Chain:
    def __init__(self, ws, name, instr=False, spoll_n=6, budget=1 << 17):
        self.ws = ws; self.name = name; self.instr = instr; self.spoll_n = spoll_n; self.budget = budget
        self.e = Asm()

    def tick(self, i):
        if not self.instr: return
        e = self.e
        e(f"s_memtime {s(sTM,2)}")
        e("s_waitcnt lgkmcnt(0)")
        e(f"s_sub_u32 {s(sTM+2)}, {s(sTM)}, {s(sTM+3)}")
        e(f"s_add_u32 {s(sACC+i)}, {s(sACC+i)}, {s(sTM+2)}")
        e(f"s_mov_b32 {s(sTM+3)}, {s(sTM)}")

    def check(self, regs, tmp, retry_label, done_label, cnt=None, fallthrough_done=True):
        e = self.e
        regs = list(regs)
        e(f"v_max3_u32 {v(tmp)}, {v(regs[0])}, {v(regs[1])}, {v(regs[2])}")
        i = 3
        while i < len(regs):
            if i + 1 < len(regs):
                e(f"v_max3_u32 {v(tmp)}, {v(tmp)}, {v(regs[i])}, {v(regs[i+1])}"); i += 2
            else:
                e(f"v_max_u32 {v(tmp)}, {v(tmp)}, {v(regs[i])}"); i += 1
        e(f"v_cmp_eq_u32 vcc, -1, {v(tmp)}")
        e(f"s_cbranch_vccz {done_label}")
        e(f"s_cmp_eq_u32 {s(sBUD)}, 0")
        e(f"s_cbranch_scc1 {done_label}")
        e(f"s_sub_u32 {s(sBUD)}, {s(sBUD)}, 1")
        if cnt is not None and self.instr:
            e(f"s_add_u32 {s(sRET+cnt)}, {s(sRET+cnt)}, 1")
        e(f"s_branch {retry_label}")

    def elect(self):
        e = self.e; n = self.name
        e(f"s_cmp_lg_u32 {s(sWAVE)}, 0")
        e(f"s_cbranch_scc1 {n}_rolewait")
        e("s_mov_b64 exec, 1")
        e(f"s_getreg_b32 {s(sT)}, hwreg(HW_REG_XCC_ID)")
        e(f"s_and_b32 {s(sT)}, {s(sT)}, 7")
        e("v_mov_b32 v3, 16")
        e("v_mov_b32 v4, 1")
        e(f"global_atomic_add v5, v3, v4, {s(sDBG,2)} sc0 sc1")
        e("v_mov_b32 v6, 999")
        e(f"s_cmp_ge_u32 {s(sT)}, 2")
        e(f"s_cbranch_scc1 {n}_notick")
        e(f"s_lshl_b32 {s(sT+1)}, {s(sT)}, 2")
        e(f"v_mov_b32 v3, {s(sT+1)}")
        e(f"global_atomic_add v6, v3, v4, {s(sDBG,2)} sc0 sc1")
        e.label(f"{n}_notick")
        e("s_waitcnt vmcnt(0)")
        e(f"v_readfirstlane_b32 {s(sT+1)}, v5")
        e(f"v_readfirstlane_b32 {s(sT+2)}, v6")
        e(f"s_mov_b32 {s(sT+6)}, -1")
        e(f"s_cmp_lt_u32 {s(sT+2)}, 32")
        e(f"s_cbranch_scc1 {n}_cand")
        e(f"s_cmp_lt_u32 {s(sT+1)}, 64")
        e(f"s_cbranch_scc0 {n}_rolewr")
        e.label(f"{n}_cand")
        e(f"s_mov_b32 {s(sT+3)}, 3000")
        e("v_mov_b32 v3, 0")
        e.label(f"{n}_dpoll")
        e(f"global_load_dwordx4 v[8:11], v3, {s(sDBG,2)} sc1")
        e("s_waitcnt vmcnt(0)")
        e(f"v_readfirstlane_b32 {s(sT+4)}, v10")
        e(f"s_cmp_lg_u32 {s(sT+4)}, 0")
        e(f"s_cbranch_scc1 {n}_decided")
        e(f"v_readfirstlane_b32 {s(sT+4)}, v8")
        e(f"v_readfirstlane_b32 {s(sT+5)}, v9")
        e(f"s_min_u32 {s(sT+4)}, {s(sT+4)}, {s(sT+5)}")
        e(f"s_mov_b32 {s(sT+5)}, 1")
        e(f"s_cmp_ge_u32 {s(sT+4)}, 32")
        e(f"s_cbranch_scc1 {n}_cas")
        e(f"s_sub_u32 {s(sT+3)}, {s(sT+3)}, 1")
        e(f"s_cmp_lg_u32 {s(sT+3)}, 0")
        e(f"s_cbranch_scc1 {n}_dpoll")
        e(f"s_mov_b32 {s(sT+5)}, 2")
        e.label(f"{n}_cas")
        e(f"v_mov_b32 v12, {s(sT+5)}")
        e("v_mov_b32 v13, 0")
        e("v_mov_b32 v3, 8")
        e(f"global_atomic_cmpswap v14, v3, v[12:13], {s(sDBG,2)} sc0 sc1")
        e("s_waitcnt vmcnt(0)")
        e(f"v_readfirstlane_b32 {s(sT+4)}, v14")
        e(f"s_cmp_eq_u32 {s(sT+4)}, 0")
        e(f"s_cselect_b32 {s(sT+4)}, {s(sT+5)}, {s(sT+4)}")
        e.label(f"{n}_decided")
        if getattr(self, 'force_slow', False):
            e(f"s_mov_b32 {s(sT+4)}, 2")
        e(f"s_cmp_eq_u32 {s(sT+4)}, 1")
        e(f"s_cbranch_scc0 {n}_slowrole")
        e(f"s_cmp_lt_u32 {s(sT+2)}, 32")
        e(f"s_cbranch_scc0 {n}_rolewr")
        e(f"s_lshl_b32 {s(sT+6)}, {s(sT)}, 5")
        e(f"s_add_u32 {s(sT+6)}, {s(sT+6)}, {s(sT+2)}")
        e(f"s_branch {n}_rolewr")
        e.label(f"{n}_slowrole")
        e(f"s_cmp_lt_u32 {s(sT+1)}, 64")
        e(f"s_cbranch_scc0 {n}_rolewr")
        e(f"s_add_u32 {s(sT+6)}, {s(sT+1)}, 256")
        e.label(f"{n}_rolewr")
        e(f"v_mov_b32 v3, {L_ROLE}")
        e(f"v_mov_b32 v4, {s(sT+6)}")
        e("ds_write_b32 v3, v4")
        e("s_mov_b64 exec, -1")
        e.label(f"{n}_rolewait")
        e("s_waitcnt lgkmcnt(0)")
        e("s_barrier")
        e(f"v_mov_b32 v3, {L_ROLE}")
        e("ds_read_b32 v4, v3")
        e("s_waitcnt lgkmcnt(0)")
        e(f"v_readfirstlane_b32 {s(sT+6)}, v4")
        e(f"s_cmp_eq_u32 {s(sT+6)}, -1")
        e(f"s_cbranch_scc1 {n}_exit")
        e(f"s_lshr_b32 {s(sMODE)}, {s(sT+6)}, 8")
        e(f"s_and_b32 {s(sCU)}, {s(sT+6)}, 63")
        e(f"s_lshr_b32 {s(sG)}, {s(sCU)}, 5")
        e(f"s_and_b32 {s(sJ)}, {s(sCU)}, 31")

    def addresses(self):
        e = self.e
        L, C16, G4, t0, t1, t2 = 64, 65, 66, 67, 68, 69
        T = sT
        e(f"v_and_b32 {v(L)}, 63, v0")
        e(f"v_and_b32 {v(C16)}, 15, {v(L)}")
        e(f"v_lshrrev_b32 {v(G4)}, 4, {v(L)}")
        e(f"s_lshl_b32 {s(sH)}, {s(sG)}, 11")
        e(f"s_lshl_b32 {s(T)}, {s(sJ)}, 6")
        e(f"s_add_u32 {s(sH)}, {s(sH)}, {s(T)}")
        e(f"v_lshlrev_b32 {v(vA)}, 4, {v(L)}")
        e(f"s_lshl_b32 {s(T)}, {s(sWAVE)}, 12")
        e(f"v_add_u32 {v(vG)}, {s(T)}, {v(vA)}")
        e(f"v_and_b32 {v(t0)}, 8, {v(L)}")
        e(f"v_mov_b32 {v(vIDX)}, 0x44444444")
        e(f"v_mov_b32 {v(t1)}, 0xeeeeeeee")
        e(f"v_cmp_ne_u32 vcc, 0, {v(t0)}")
        e(f"v_cndmask_b32 {v(vIDX)}, {v(vIDX)}, {v(t1)}, vcc")
        e(f"v_lshrrev_b32 {v(t0)}, 2, {v(C16)}")
        e(f"v_lshlrev_b32 {v(t0)}, 3, {v(t0)}")
        e(f"v_and_b32 {v(t1)}, 3, {v(C16)}")
        e(f"v_add_u32 {v(t0)}, {v(t0)}, {v(t1)}")
        e(f"s_and_b32 {s(T)}, {s(sWAVE)}, 1")
        e(f"s_lshl_b32 {s(T)}, {s(T)}, 2")
        e(f"v_add_u32 {v(t0)}, {s(T)}, {v(t0)}")
        e(f"v_lshlrev_b32 {v(t0)}, 13, {v(t0)}")
        e(f"s_lshl_b32 {s(T)}, {s(sH)}, 1")
        e(f"v_add_u32 {v(t0)}, {s(T)}, {v(t0)}")
        e(f"v_lshl_add_u32 {v(vKX)}, {v(G4)}, 4, {v(t0)}")
        e(f"s_lshl_b32 {s(T)}, {s(sWAVE)}, 4")
        e(f"s_add_u32 {s(T)}, {s(T)}, {s(sH)}")
        e(f"v_add_u32 {v(t2)}, {s(T)}, {v(C16)}")
        e(f"v_lshlrev_b32 {v(t0)}, 6, {v(t2)}")
        e(f"v_lshl_add_u32 {v(t0)}, {v(G4)}, 4, {v(t0)}")
        e(f"v_add_u32 {v(vVX)}, {self.ws.size('k')}, {v(t0)}")
        e(f"v_and_b32 {v(t0)}, 1, {v(G4)}")
        e(f"v_lshlrev_b32 {v(t0)}, 3, {v(t0)}")
        e(f"v_lshl_add_u32 {v(t0)}, {v(t2)}, 4, {v(t0)}")
        e(f"v_add_u32 {v(t0)}, {self.ws.size('km')}, {v(t0)}")
        e(f"v_mov_b32 {v(t1)}, {OOB}")
        e(f"v_cmp_gt_u32 vcc, 2, {v(G4)}")
        e(f"v_cndmask_b32 {v(vVM)}, {v(t1)}, {v(t0)}, vcc")
        e(f"s_lshl_b32 {s(T)}, {s(sWAVE)}, 9")
        e(f"s_add_u32 {s(T)}, {s(T)}, {L_T}")
        e(f"v_lshlrev_b32 {v(t0)}, 5, {v(C16)}")
        e(f"v_lshl_add_u32 {v(t0)}, {v(G4)}, 3, {v(t0)}")
        e(f"v_add_u32 {v(vTW)}, {s(T)}, {v(t0)}")
        e(f"v_lshrrev_b32 {v(t0)}, 2, {v(C16)}")
        e(f"v_lshl_add_u32 {v(t0)}, {v(G4)}, 3, {v(t0)}")
        e(f"v_lshlrev_b32 {v(t0)}, 5, {v(t0)}")
        e(f"v_and_b32 {v(t1)}, 3, {v(C16)}")
        e(f"v_lshl_add_u32 {v(t0)}, {v(t1)}, 3, {v(t0)}")
        e(f"v_add_u32 {v(vTR)}, {L_T}, {v(t0)}")
        Q8, HI8 = 70, 71
        e(f"v_and_b32 {v(Q8)}, 7, {v(C16)}")
        e(f"v_lshrrev_b32 {v(HI8)}, 3, {v(C16)}")
        e(f"s_and_b32 {s(T)}, {s(sCU)}, 62")
        e(f"s_lshl_b32 {s(T)}, {s(T)}, 11")
        e(f"s_add_u32 {s(T)}, {s(T)}, {R_RS}")
        e(f"v_lshl_add_u32 {v(t0)}, {v(G4)}, 3, {v(Q8)}")
        e(f"v_lshlrev_b32 {v(t0)}, 4, {v(t0)}")
        e(f"v_lshl_add_u32 {v(t1)}, {v(HI8)}, 9, {v(t0)}")
        e(f"v_add_u32 {v(vSR)}, {s(T)}, {v(t1)}")
        e(f"v_add_u32 {v(t1)}, {1024-256}, {v(t0)}")
        e(f"v_mov_b32 {v(t2)}, 1280")
        e(f"v_cmp_le_u32 vcc, 2, {v(G4)}")
        e(f"v_cndmask_b32 {v(t1)}, {v(t2)}, {v(t1)}, vcc")
        e(f"v_lshl_add_u32 {v(t1)}, {v(HI8)}, 3, {v(t1)}")
        e(f"v_add_u32 {v(vGR)}, {s(T)}, {v(t1)}")
        e(f"s_lshl_b32 {s(T)}, {s(sCU)}, 11")
        e(f"s_add_u32 {s(T)}, {s(T)}, {R_RS}")
        e(f"s_lshl_b32 {s(T+1)}, {s(sWAVE)}, 9")
        e(f"s_cmp_eq_u32 {s(sWAVE)}, 2")
        e(f"s_cselect_b32 {s(T+2)}, {1024-256}, {s(T+1)}")
        e(f"s_add_u32 {s(T+2)}, {s(T+2)}, {s(T)}")
        e(f"v_add_u32 {v(t1)}, {s(T+2)}, {v(t0)}")
        e(f"v_mov_b32 {v(t2)}, {OOB}")
        e(f"v_cmp_gt_u32 vcc, 8, {v(C16)}")
        e(f"v_cndmask_b32 {v(t1)}, {v(t2)}, {v(t1)}, vcc")
        e(f"s_cmp_eq_u32 {s(sWAVE)}, 2")
        e(f"s_cselect_b32 {s(T+2)}, 2, 0")
        e(f"v_cmp_le_u32 vcc, {s(T+2)}, {v(G4)}")
        e(f"v_cndmask_b32 {v(vSW)}, {v(t2)}, {v(t1)}, vcc")
        e(f"s_lshl_b32 {s(T)}, {s(sWAVE)}, 11")
        e(f"s_add_u32 {s(T)}, {s(T)}, {L_WV}")
        e(f"v_add_u32 {v(vWV0)}, {s(T)}, {v(vA)}")
        e(f"v_add_u32 {v(vWV1)}, 0x10000, {v(vWV0)}")
        e(f"s_lshl_b32 {s(T)}, {s(sG)}, 15")
        e(f"s_add_u32 {s(T)}, {s(T)}, {R_RO}")
        e(f"s_lshl_b32 {s(T+1)}, {s(sJ)}, 10")
        e(f"s_lshl_b32 {s(T+2)}, {s(sWAVE)}, 8")
        e(f"s_add_u32 {s(T+1)}, {s(T+1)}, {s(T+2)}")
        e(f"s_add_u32 {s(T+1)}, {s(T+1)}, {s(T)}")
        e(f"v_lshrrev_b32 {v(t0)}, 1, {v(G4)}")
        e(f"v_lshlrev_b32 {v(t0)}, 7, {v(t0)}")
        e(f"v_lshl_add_u32 {v(t0)}, {v(C16)}, 4, {v(t0)}")
        e(f"v_and_b32 {v(t1)}, 1, {v(G4)}")
        e(f"v_lshl_add_u32 {v(t0)}, {v(t1)}, 3, {v(t0)}")
        e(f"v_add_u32 {v(t0)}, {s(T+1)}, {v(t0)}")
        e(f"v_mov_b32 {v(t2)}, {OOB}")
        e(f"v_cmp_gt_u32 vcc, 8, {v(C16)}")
        e(f"v_cndmask_b32 {v(vOW)}, {v(t2)}, {v(t0)}, vcc")
        e(f"s_lshl_b32 {s(T+1)}, {s(sWAVE)}, 13")
        e(f"s_add_u32 {s(T+1)}, {s(T+1)}, {s(T)}")
        e(f"v_add_u32 {v(vOR)}, {s(T+1)}, {v(vA)}")
        e(f"s_mul_i32 {s(T)}, {s(sWAVE)}, 1152")
        e(f"s_add_u32 {s(T)}, {s(T)}, {L_R}")
        e(f"v_and_b32 {v(t0)}, 1, {v(G4)}")
        e(f"v_mul_u32_u24 {v(t0)}, 576, {v(t0)}")
        e(f"v_lshrrev_b32 {v(t1)}, 1, {v(G4)}")
        e(f"v_lshl_add_u32 {v(t1)}, {v(t1)}, 4, {v(C16)}")
        e(f"v_lshl_add_u32 {v(t0)}, {v(t1)}, 2, {v(t0)}")
        e(f"v_add_u32 {v(vRW)}, {s(T)}, {v(t0)}")
        RR, KC, HF = 70, 71, 72
        e(f"v_and_b32 {v(RR)}, 7, {v(L)}")
        e(f"v_lshrrev_b32 {v(KC)}, 3, {v(L)}")
        e(f"v_and_b32 {v(KC)}, 3, {v(KC)}")
        e(f"v_lshrrev_b32 {v(HF)}, 5, {v(L)}")
        e(f"v_mul_u32_u24 {v(t0)}, 144, {v(RR)}")
        e(f"v_lshl_add_u32 {v(t0)}, {v(KC)}, 5, {v(t0)}")
        e(f"v_lshl_add_u32 {v(t0)}, {v(HF)}, 4, {v(t0)}")
        e(f"v_add_u32 {v(vRR)}, {L_R}, {v(t0)}")
        e(f"s_lshl_b32 {s(T)}, {s(sG)}, 14")
        e(f"s_lshl_b32 {s(T+1)}, {s(sJ)}, 9")
        e(f"s_add_u32 {s(T)}, {s(T)}, {s(T+1)}")
        e(f"v_lshlrev_b32 {v(t0)}, 7, {v(KC)}")
        e(f"v_lshl_add_u32 {v(t0)}, {v(RR)}, 4, {v(t0)}")
        e(f"v_lshl_add_u32 {v(t0)}, {v(HF)}, 3, {v(t0)}")
        e(f"v_add_u32 {v(vPW)}, {s(T)}, {v(t0)}")
        e(f"s_lshl_b32 {s(T+1)}, {s(sCU)}, 11")
        e(f"s_add_u32 {s(T+1)}, {s(T+1)}, {R_RS}")
        e(f"s_lshl_b32 {s(T+2)}, {s(sG)}, 15")
        e(f"s_lshl_b32 {s(T+3)}, {s(sJ)}, 10")
        e(f"s_add_u32 {s(T+2)}, {s(T+2)}, {s(T+3)}")
        e(f"s_add_u32 {s(T+2)}, {s(T+2)}, {R_RO}")
        e(f"s_add_u32 {s(T+3)}, {s(T)}, {R_RR}")
        e(f"s_mov_b32 {s(T+4)}, {s(T)}")
        e(f"s_add_u32 {s(T+5)}, {s(T+1)}, {1024-512}")
        e(f"s_cmp_eq_u32 {s(sWAVE)}, 1")
        e(f"s_cselect_b32 {s(T+4)}, {s(T+3)}, {s(T+4)}")
        e(f"s_cselect_b32 {s(T+5)}, {OOB}, {s(T+5)}")
        e(f"s_cmp_eq_u32 {s(sWAVE)}, 2")
        e(f"s_cselect_b32 {s(T+4)}, {s(T+1)}, {s(T+4)}")
        e(f"s_cselect_b32 {s(T+5)}, {s(T+1)}, {s(T+5)}")
        e(f"s_cmp_eq_u32 {s(sWAVE)}, 3")
        e(f"s_cselect_b32 {s(T+4)}, {s(T+2)}, {s(T+4)}")
        e(f"s_cselect_b32 {s(T+5)}, {s(T+2)}, {s(T+5)}")
        e(f"v_mov_b32 {v(t0)}, {s(T+4)}")
        e(f"v_mov_b32 {v(t1)}, {s(T+5)}")
        e(f"v_cmp_gt_u32 vcc, 32, {v(L)}")
        e(f"v_cndmask_b32 {v(t0)}, {v(t1)}, {v(t0)}, vcc")
        e(f"v_add_u32 {v(t0)}, {v(t0)}, {v(vA)}")
        e(f"s_cmp_eq_u32 {s(sWAVE)}, 0")
        e(f"s_cselect_b32 {s(T+4)}, 48, 64")
        e(f"v_mov_b32 {v(t2)}, {OOB}")
        e(f"v_cmp_gt_u32 vcc, {s(T+4)}, {v(L)}")
        e(f"v_cndmask_b32 {v(vPO)}, {v(t2)}, {v(t0)}, vcc")
        e(f"v_lshlrev_b32 {v(t0)}, 13, {v(70)}")
        e(f"s_lshl_b32 {s(T)}, {s(sH)}, 1")
        e(f"v_add_u32 {v(t0)}, {s(T)}, {v(t0)}")
        e(f"v_lshl_add_u32 {v(t0)}, {v(G4)}, 4, {v(t0)}")
        e(f"v_cmp_le_u32 vcc, 8, {v(C16)}")
        e(f"v_cndmask_b32 {v(vKM)}, {v(t2)}, {v(t0)}, vcc")
        e(f"v_lshlrev_b32 {v(t0)}, 13, {v(L)}")
        e(f"v_add_u32 {v(t0)}, {s(T)}, {v(t0)}")
        e(f"s_lshl_b32 {s(T+1)}, {s(sH)}, 6")
        e(f"s_add_u32 {s(T+1)}, {s(T+1)}, {self.ws.size('k') - 32*128}")
        e(f"v_lshlrev_b32 {v(t1)}, 7, {v(L)}")
        e(f"v_add_u32 {v(t1)}, {s(T+1)}, {v(t1)}")
        e(f"v_cmp_gt_u32 vcc, 32, {v(L)}")
        e(f"v_cndmask_b32 {v(vPF)}, {v(t1)}, {v(t0)}, vcc")
        for i in range(4):
            e(f"v_mov_b32 {v(vPOI+i)}, -1")
        e(f"s_mov_b32 {s(sLO)}, 0x00003f80")
        e(f"s_mov_b32 {s(sHI)}, 0x3f800000")
        e(f"s_mov_b32 {s(sC)}, {hex(f2u(C_SCALE))}")

    def ring_init(self):
        e = self.e; n = self.name
        T = sT
        L, D = 64, 68
        e(f"v_and_b32 {v(L)}, 63, v0")
        for sl in range(1, 4):
            e(f"s_mov_b32 {s(T)}, {sl*SLOT}")
            e(f"buffer_store_dwordx4 {v(vPOI,4)}, {v(vPO)}, {s(sRING,4)}, {s(T)} offen sc1")
        for i in range(4):
            e(f"v_mov_b32 {v(D+i)}, -1")
        e(f"s_cmp_ge_u32 {s(sWAVE)}, 2")
        e(f"s_cbranch_scc1 {n}_ri_store")
        srd(e, sW, sM0, SZ['mem0'])
        e(f"v_and_b32 {v(66)}, 7, {v(L)}")
        e(f"v_lshlrev_b32 {v(66)}, 11, {v(66)}")
        e(f"v_lshrrev_b32 {v(67)}, 3, {v(L)}")
        e(f"v_lshl_add_u32 {v(66)}, {v(67)}, 4, {v(66)}")
        e(f"s_lshl_b32 {s(T)}, {s(sJ)}, 6")
        e(f"s_cmp_eq_u32 {s(sG)}, 0")
        e(f"s_cselect_b32 {s(T)}, {s(T)}, {OOB}")
        e(f"v_add_u32 {v(66)}, {s(T)}, {v(66)}")
        e(f"buffer_load_dwordx4 {v(72,4)}, {v(66)}, {s(sW,4)}, 0 offen")
        e("s_waitcnt vmcnt(0)")
        e(f"v_cmp_gt_u32 vcc, 32, {v(L)}")
        for i in range(4):
            e(f"v_cndmask_b32 {v(D+i)}, {v(D+i)}, {v(72+i)}, vcc")
        e.label(f"{n}_ri_store")
        e(f"buffer_store_dwordx4 {v(D,4)}, {v(vPO)}, {s(sRING,4)}, 0 offen sc1")
        e(f"s_cmp_lg_u32 {s(sWAVE)}, 3")
        e(f"s_cbranch_scc1 {n}_ri_done")
        for i in range(4):
            e(f"v_mov_b32 {v(72+i)}, 0xff800000")
        e(f"s_lshl_b32 {s(T)}, {s(sCU)}, 11")
        e(f"s_add_u32 {s(T)}, {s(T)}, {R_RS + 1280}")
        e(f"v_lshlrev_b32 {v(66)}, 18, {v(L)}")
        e(f"v_add_u32 {v(66)}, {s(T)}, {v(66)}")
        e(f"v_mov_b32 {v(67)}, {OOB}")
        e(f"v_cmp_gt_u32 vcc, 4, {v(L)}")
        e(f"v_cndmask_b32 {v(66)}, {v(67)}, {v(66)}, vcc")
        e(f"buffer_store_dwordx4 {v(72,4)}, {v(66)}, {s(sRING,4)}, 0 offen sc1")
        e.label(f"{n}_ri_done")
        e("s_waitcnt vmcnt(0)")
        e("s_barrier")
        e(f"s_cmp_lg_u32 {s(sWAVE)}, 0")
        e(f"s_cbranch_scc1 {n}_ri_arr")
        e("s_mov_b64 exec, 1")
        e("v_mov_b32 v64, 12")
        e("v_mov_b32 v65, 1")
        e(f"global_atomic_add v64, v65, {s(sDBG,2)} sc1")
        e("s_waitcnt vmcnt(0)")
        e("s_mov_b64 exec, -1")
        e.label(f"{n}_ri_arr")

    def init_wait(self):
        e = self.e; n = self.name
        e(f"s_mov_b32 {s(sT)}, 200000")
        e("v_mov_b32 v64, 12")
        e.label(f"{n}_iw")
        e(f"global_load_dword v65, v64, {s(sDBG,2)} sc1")
        e("s_waitcnt vmcnt(0)")
        e(f"v_readfirstlane_b32 {s(sT+1)}, v65")
        e(f"s_cmp_ge_u32 {s(sT+1)}, 64")
        e(f"s_cbranch_scc1 {n}_iw_done")
        e(f"s_sub_u32 {s(sT)}, {s(sT)}, 1")
        e(f"s_cmp_lg_u32 {s(sT)}, 0")
        e(f"s_cbranch_scc1 {n}_iw")
        e.label(f"{n}_iw_done")

    def weights(self):
        e = self.e
        T = sT
        L, C16, G4, RP, CC, t0, t1, t2 = 64, 65, 66, 67, 68, 69, 70, 71
        DE, DO, TRQ, DWO, TRO = 24, 25, 26, 27, 28
        e(f"v_and_b32 {v(L)}, 63, v0")
        e(f"v_and_b32 {v(C16)}, 15, {v(L)}")
        e(f"v_lshrrev_b32 {v(G4)}, 4, {v(L)}")
        e(f"v_lshrrev_b32 {v(RP)}, 2, {v(C16)}")
        e(f"v_and_b32 {v(CC)}, 3, {v(L)}")
        e(f"v_lshrrev_b32 {v(t0)}, 3, {v(L)}")
        e(f"s_lshl_b32 {s(T)}, {s(sWAVE)}, 7")
        e(f"v_add_u32 {v(t0)}, {s(T)}, {v(t0)}")
        e(f"v_lshlrev_b32 {v(t0)}, 13, {v(t0)}")
        e(f"v_lshrrev_b32 {v(t1)}, 5, {v(L)}")
        e(f"v_lshlrev_b32 {v(t1)}, 1, {v(t1)}")
        e(f"v_and_b32 {v(t2)}, 7, {v(L)}")
        e(f"v_xor_b32 {v(t1)}, {v(t1)}, {v(t2)}")
        e(f"v_lshl_add_u32 {v(DE)}, {v(t1)}, 4, {v(t0)}")
        e(f"v_xor_b32 {v(DO)}, 64, {v(DE)}")
        e(f"v_lshrrev_b32 {v(t0)}, 1, {v(G4)}")
        e(f"v_lshlrev_b32 {v(t0)}, 4, {v(t0)}")
        e(f"v_and_b32 {v(t1)}, 1, {v(G4)}")
        e(f"v_lshl_add_u32 {v(t0)}, {v(t1)}, 2, {v(t0)}")
        e(f"v_lshrrev_b32 {v(t2)}, 1, {v(RP)}")
        e(f"v_lshl_add_u32 {v(t0)}, {v(t2)}, 3, {v(t0)}")
        e(f"v_lshl_add_u32 {v(t1)}, {v(t2)}, 1, {v(t1)}")
        e(f"v_and_b32 {v(t2)}, 1, {v(RP)}")
        e(f"v_add_u32 {v(72)}, {v(t0)}, {v(t2)}")
        e(f"v_lshlrev_b32 {v(73)}, 7, {v(72)}")
        e(f"v_lshlrev_b32 {v(t1)}, 1, {v(t1)}")
        e(f"v_lshrrev_b32 {v(74)}, 1, {v(CC)}")
        e(f"s_lshl_b32 {s(T)}, {s(sWAVE)}, 1")
        e(f"v_add_u32 {v(75)}, {s(T)}, {v(74)}")
        e(f"v_xor_b32 {v(75)}, {v(75)}, {v(t1)}")
        e(f"v_lshl_add_u32 {v(73)}, {v(75)}, 4, {v(73)}")
        e(f"v_and_b32 {v(75)}, 1, {v(CC)}")
        e(f"v_lshl_add_u32 {v(73)}, {v(75)}, 3, {v(73)}")
        e(f"v_add_u32 {v(TRQ)}, {L_WV}, {v(73)}")
        e(f"v_lshrrev_b32 {v(t0)}, 2, {v(L)}")
        e(f"v_lshrrev_b32 {v(t1)}, 3, {v(t0)}")
        e(f"v_lshlrev_b32 {v(t1)}, 1, {v(t1)}")
        e(f"v_xor_b32 {v(t0)}, {v(t0)}, {v(t1)}")
        e(f"v_lshrrev_b32 {v(t1)}, 2, {v(t0)}")
        e(f"v_and_b32 {v(t1)}, 1, {v(t1)}")
        e(f"v_lshlrev_b32 {v(t1)}, 1, {v(t1)}")
        e(f"v_xor_b32 {v(t1)}, {v(t1)}, {v(CC)}")
        e(f"s_lshl_b32 {s(T)}, {s(sWAVE)}, 9")
        e(f"v_add_u32 {v(t0)}, {s(T)}, {v(t0)}")
        e(f"v_lshlrev_b32 {v(t0)}, 11, {v(t0)}")
        e(f"v_lshl_add_u32 {v(DWO)}, {v(t1)}, 4, {v(t0)}")
        e(f"v_lshrrev_b32 {v(t0)}, 1, {v(G4)}")
        e(f"v_lshlrev_b32 {v(t0)}, 4, {v(t0)}")
        e(f"v_and_b32 {v(t1)}, 1, {v(G4)}")
        e(f"v_lshl_add_u32 {v(t0)}, {v(t1)}, 2, {v(t0)}")
        e(f"v_lshrrev_b32 {v(t2)}, 1, {v(RP)}")
        e(f"v_lshl_add_u32 {v(t0)}, {v(t2)}, 3, {v(t0)}")
        e(f"v_and_b32 {v(72)}, 1, {v(RP)}")
        e(f"v_add_u32 {v(t0)}, {v(t0)}, {v(72)}")
        e(f"v_lshlrev_b32 {v(t1)}, 1, {v(t1)}")
        for qp in range(2):
            for ct in range(2):
                e(f"v_xor_b32 {v(72)}, {qp}, {v(t2)}")
                e(f"v_lshl_add_u32 {v(72)}, {v(72)}, 1, {v(t0)}")
                e(f"v_lshlrev_b32 {v(72)}, 6, {v(72)}")
                e(f"v_add_u32 {v(73)}, {2*ct}, {v(74)}")
                e(f"v_xor_b32 {v(73)}, {v(73)}, {v(t1)}")
                e(f"v_lshl_add_u32 {v(72)}, {v(73)}, 4, {v(72)}")
                e(f"v_lshl_add_u32 {v(72)}, {v(75)}, 3, {v(72)}")
                e(f"s_lshl_b32 {s(T)}, {s(sWAVE)}, 14")
                e(f"s_add_u32 {s(T)}, {s(T)}, {L_WV}")
                e(f"v_add_u32 {v(TRO+2*qp+ct)}, {s(T)}, {v(72)}")

        def issue(c):
            H = L_WV + (c & 1) * 65536
            mat = {0: sWQ, 1: sWQ, 2: sWK, 3: sWK, 4: sWO, 5: sWO, 6: sWV, 7: sWV}[c]
            srd(e, sW, mat, SZ['Wq'])
            e(f"s_lshl_b32 {s(T)}, {s(sWAVE)}, 14")
            e(f"s_add_u32 {s(T)}, {s(T)}, {H}")
            if c in (4, 5):
                e(f"s_lshl_b32 {s(T+1)}, {s(sG)}, 22")
                e(f"s_lshl_b32 {s(T+2)}, {s(sJ)}, 6")
                e(f"s_add_u32 {s(T+1)}, {s(T+1)}, {s(T+2)}")
                if c & 1: e(f"s_add_u32 {s(T+1)}, {s(T+1)}, {256*2048}")
                step = 32768
            else:
                e(f"s_lshl_b32 {s(T+1)}, {s(sH)}, 1")
                if c & 1: e(f"s_add_u32 {s(T+1)}, {s(T+1)}, {512*8192}")
                step = 65536
            for i in range(16):
                vo = DWO if c in (4, 5) else (DO if i & 1 else DE)
                e(f"s_add_u32 m0, {s(T)}, {i*1024}")
                e(f"buffer_load_dwordx4 {v(vo)}, {s(sW,4)}, {s(T+1)} offen lds")
                if i < 15: e(f"s_add_u32 {s(T+1)}, {s(T+1)}, {step}")

        issue(0); issue(1)
        for c in range(8):
            hoff = (c & 1) * 65536
            e(f"s_waitcnt vmcnt({16 if c < 7 else 0})")
            e("s_barrier")
            if hoff:
                for r in ((TRQ,) if c not in (4, 5) else tuple(TRO+i for i in range(4))):
                    e(f"v_add_u32 {v(r)}, 0x10000, {v(r)}")
            if c in (4, 5):
                for ksl in range(4):
                    ks = 4 * (c & 1) + ksl
                    for ct in range(2):
                        for q in range(4):
                            d = vWO + (ks * 2 + ct) * 8 + 2 * q
                            e(f"ds_read_b64_tr_b16 {v(d,2)}, {v(TRO + 2*(q&1) + ct)} offset:{ksl*4096 + (q>>1)*2048}")
            else:
                for ksl in range(8):
                    ks = 8 * (c & 1) + ksl
                    for q in range(4):
                        off = ksl * 8192 + (q >> 1) * 4096 + (q & 1) * 256
                        if c < 2: d = a(ks * 8 + 2 * q, 2)
                        elif c < 4: d = a(128 + ks * 8 + 2 * q, 2)
                        else: d = v(vAF + ksl * 8 + 2 * q, 2)
                        e(f"ds_read_b64_tr_b16 {d}, {v(TRQ)} offset:{off}")
            if hoff:
                e("s_waitcnt lgkmcnt(0)")
                for r in ((TRQ,) if c not in (4, 5) else tuple(TRO+i for i in range(4))):
                    e(f"v_subrev_u32 {v(r)}, 0x10000, {v(r)}")
            e("s_waitcnt lgkmcnt(0)")
            e("s_barrier")
            if c >= 6:
                vb = vWV1 if c & 1 else vWV0
                for ksl in range(8):
                    for u in range(2):
                        e(f"ds_write_b128 {v(vb)}, {v(vAF + ksl*8 + 4*u, 4)} offset:{ksl*8192 + u*1024}")
            if c + 2 < 8:
                issue(c + 2)
        e("s_waitcnt lgkmcnt(0)")

    def steps(self, mode):
        e = self.e; n = f"{self.name}_{mode}"
        loc = " sc1" if mode == 's' else ""
        T = sT
        e.label(f"{n}_top")
        self.tick(0)
        if getattr(self, 'nsteps', None) is not None:
            e(f"s_cmp_ge_u32 {s(sSTEP)}, {self.nsteps}")
            e(f"s_cbranch_scc1 {self.name}_fin")
        e(f"s_and_b32 {s(T)}, {s(sSTEP)}, 3")
        e(f"s_lshl_b32 {s(sSLOT)}, {s(T)}, 18")
        e(f"s_add_u32 {s(T)}, {s(sSTEP)}, 1")
        e(f"s_and_b32 {s(T)}, {s(T)}, 3")
        e(f"s_lshl_b32 {s(sNEXT)}, {s(T)}, 18")
        e(f"s_add_u32 {s(sNR)}, {s(sNEXT)}, {R_RR}")
        e(f"s_xor_b32 {s(sPOIS)}, {s(sSLOT)}, {2*SLOT}")
        e(f"s_add_u32 {s(sSLOT4)}, {s(sSLOT)}, 4096")
        e(f"s_lshl_b32 {s(T)}, {s(sG)}, 14")
        e(f"s_add_u32 {s(sPL)}, {s(sSLOT)}, {s(T)}")
        e(f"s_xor_b32 {s(T)}, {s(T)}, 16384")
        e(f"s_add_u32 {s(sPR)}, {s(sSLOT)}, {s(T)}")
        e(f"s_add_u32 {s(sPR)}, {s(sPR)}, {R_RR}")
        e(f"s_lshl_b32 {s(sKVO)}, {s(sSTEP)}, 18")
        e(f"s_lshl_b32 {s(sKMO)}, {s(sSTEP)}, 16")
        LG = 96
        e.label(f"{n}_lg")
        for i in range(4):
            e(f"buffer_load_dwordx4 {v(LG+4*i,4)}, {v(vG)}, {s(sRING,4)}, {s(sPL)} offen offset:{i*1024} sc1")
        e("s_waitcnt vmcnt(0)")
        self.check(range(LG, LG+16), vB0, f"{n}_lg", f"{n}_lg_ok", 0)
        e.label(f"{n}_lg_ok")
        self.tick(1)
        for i in range(4):
            e(f"buffer_load_dwordx4 {v(vX+4*i,4)}, {v(vG)}, {s(sRING,4)}, {s(sPR)} offen offset:{i*1024} sc1")
        for i in range(16):
            e(f"v_lshlrev_b32 {v(vAF+2*i)}, 16, {v(LG+i)}")
            e(f"v_and_b32 {v(vAF+2*i+1)}, 0xffff0000, {v(LG+i)}")
        e(f"s_branch {n}_rg_w")
        e.label(f"{n}_rg")
        for i in range(4):
            e(f"buffer_load_dwordx4 {v(vX+4*i,4)}, {v(vG)}, {s(sRING,4)}, {s(sPR)} offen offset:{i*1024} sc1")
        e.label(f"{n}_rg_w")
        e("s_waitcnt vmcnt(0)")
        self.check(range(vX, vX+16), vB0, f"{n}_rg", f"{n}_rg_ok", 1)
        e.label(f"{n}_rg_ok")
        self.tick(2)
        for i4 in range(4):
            for i in range(4*i4, 4*i4+4):
                e(f"v_dot2_f32_bf16 {v(vAF+2*i)}, {v(vX+i)}, {s(sLO)}, {v(vAF+2*i)}")
                e(f"v_dot2_f32_bf16 {v(vAF+2*i+1)}, {v(vX+i)}, {s(sHI)}, {v(vAF+2*i+1)}")
            for i in range(4*i4, 4*i4+4):
                e(f"v_cvt_pk_bf16_f32 {v(LG+i)}, {v(vAF+2*i)}, {v(vAF+2*i+1)}")
            e(f"ds_write_b128 {v(vG)}, {v(LG+4*i4,4)} offset:{L_M + i4*1024}")
        e("s_waitcnt lgkmcnt(0)")
        e("s_barrier")
        self.tick(3)
        for ks in range(16):
            e(f"ds_read_b128 {v(vAF+4*ks,4)}, {v(vA)} offset:{L_M + ks*1024}")
        ACQ, ACK = vF, vF + 4
        for i in range(8):
            e(f"v_mov_b32 {v(vF+i)}, 0")
        e(f"s_cmp_eq_u32 {s(sWAVE)}, 1")
        e(f"s_cbranch_scc1 {n}_w1")
        e(f"buffer_store_dwordx4 {v(vPOI,4)}, {v(vPO)}, {s(sRING,4)}, {s(sPOIS)} offen{loc}")
        e(f"s_branch {n}_w2")
        e.label(f"{n}_w1")
        e(f"buffer_store_dwordx4 {v(vPOI,4)}, {v(vPO)}, {s(sRING,4)}, {s(sPOIS)} offen sc1")
        e.label(f"{n}_w2")
        for u in range(2):
            e(f"buffer_load_dwordx4 {v(vX+4*u,4)}, {v(vKX)}, {s(sKV,4)}, {s(sKVO)} offen offset:{u*64}")
        e(f"buffer_load_dwordx4 {v(vX+12,4)}, {v(vVX)}, {s(sKV,4)}, {s(sKVO)} offen")
        e(f"s_cmp_lg_u32 {s(sWAVE)}, 3")
        e(f"s_cbranch_scc1 {n}_nopf")
        e(f"s_add_u32 {s(T)}, {s(sKVO)}, {SLOT}")
        e(f"buffer_load_dword v0, {v(vPF)}, {s(sKV,4)}, {s(T)} offen")
        e.label(f"{n}_nopf")
        for ks in range(16):
            e(f"s_waitcnt lgkmcnt({15-ks})")
            if ks == 15:
                for u in range(2):
                    e(f"ds_read_b128 {v(vB0+4*u,4)}, {v(vWV0)} offset:{u*1024}")
            e(f"v_smfmac_f32_16x16x64_bf16 {v(ACQ,4)}, {v(vAF+4*ks,4)}, {a(8*ks,8)}, {v(vIDX)}")
            e(f"v_smfmac_f32_16x16x64_bf16 {v(ACK,4)}, {v(vAF+4*ks,4)}, {a(128+8*ks,8)}, {v(vIDX)}")
        for i in range(4):
            e(f"v_permlane32_swap_b32 {v(ACQ+i)}, {v(ACK+i)}")
        for i in range(4):
            e(f"v_add_f32 {v(ACQ+i)}, {v(ACQ+i)}, {v(ACK+i)}")
        e(f"v_cvt_pk_bf16_f32 {v(ACK)}, {v(ACQ)}, {v(ACQ+1)}")
        e(f"v_cvt_pk_bf16_f32 {v(ACK+1)}, {v(ACQ+2)}, {v(ACQ+3)}")
        e(f"ds_write_b64 {v(vTW)}, {v(ACK,2)}")
        e(f"s_cmp_eq_u32 {s(sWAVE)}, 3")
        e(f"s_cbranch_scc1 {n}_h3")
        e("s_waitcnt vmcnt(1) lgkmcnt(0)")
        e(f"s_branch {n}_h4")
        e.label(f"{n}_h3")
        e("s_waitcnt vmcnt(2) lgkmcnt(0)")
        e.label(f"{n}_h4")
        e("s_barrier")
        self.tick(4)
        for u in range(2):
            for ee in range(2):
                e(f"ds_read_b64_tr_b16 {v(vF+4*u+2*ee,2)}, {v(vTR)} offset:{u*1024 + ee*128}")
        SD = vX + 8
        e("s_waitcnt lgkmcnt(0)")
        e(f"s_cmp_eq_u32 {s(sWAVE)}, 3")
        e(f"s_cbranch_scc1 {n}_i3")
        e(f"s_cmp_eq_u32 {s(sWAVE)}, 2")
        e(f"s_cbranch_scc1 {n}_i2")
        e(f"v_mfma_f32_16x16x32_bf16 {v(SD,4)}, {v(vX,4)}, {v(vF,4)}, 0")
        e(f"v_mfma_f32_16x16x32_bf16 {v(SD,4)}, {v(vX+4,4)}, {v(vF+4,4)}, {v(SD,4)}")
        e(f"s_branch {n}_ipub")
        e.label(f"{n}_i2")
        e(f"v_mfma_f32_16x16x32_bf16 {v(SD,4)}, {v(vF,4)}, {v(vF,4)}, 0")
        e(f"v_mfma_f32_16x16x32_bf16 {v(SD,4)}, {v(vF+4,4)}, {v(vF+4,4)}, {v(SD,4)}")
        e.label(f"{n}_ipub")
        for u in range(2):
            e(f"ds_read_b128 {v(vF+4*u,4)}, {v(vWV0)} offset:{8192 + u*1024}")
        for u in range(2):
            e(f"ds_read_b128 {v(vX+4*u,4)}, {v(vWV0)} offset:{2*8192 + u*1024}")
        e(f"buffer_store_dwordx4 {v(SD,4)}, {v(vSW)}, {s(sRING,4)}, {s(sSLOT)} offen{loc}")
        e(f"s_branch {n}_iv")
        e.label(f"{n}_i3")
        for u in range(2):
            e(f"buffer_store_dwordx4 {v(vF+4*u,4)}, {v(vKM)}, {s(sKM,4)}, {s(sKMO)} offen offset:{u*64}")
        for u in range(2):
            e(f"ds_read_b128 {v(vF+4*u,4)}, {v(vWV0)} offset:{8192 + u*1024}")
        for u in range(2):
            e(f"ds_read_b128 {v(vX+4*u,4)}, {v(vWV0)} offset:{2*8192 + u*1024}")
        e.label(f"{n}_iv")
        for i in range(4):
            e(f"v_mov_b32 {v(vACCV+i)}, 0")
        buf = {0: vB0, 1: vF, 2: vX}
        nxt = 3
        free = []
        SP = vX
        def spolls():
            e(f"buffer_load_dwordx4 {v(SP,4)}, {v(vSR)}, {s(sRING,4)}, {s(sSLOT)} offen sc1")
            e(f"buffer_load_dwordx4 {v(SP+4,4)}, {v(vSR)}, {s(sRING,4)}, {s(sSLOT)} offen offset:2048 sc1")
            e(f"buffer_load_dwordx2 {v(SP+8,2)}, {v(vGR)}, {s(sRING,4)}, {s(sSLOT)} offen sc1")
            e(f"buffer_load_dwordx2 {v(SP+10,2)}, {v(vGR)}, {s(sRING,4)}, {s(sSLOT)} offen offset:2048 sc1")
        for k in range(16):
            e(f"s_waitcnt lgkmcnt({2*(nxt-1-k)})")
            e(f"v_smfmac_f32_16x16x64_bf16 {v(vACCV,4)}, {v(vAF+4*k,4)}, {v(buf[k],8)}, {v(vIDX)}")
            if buf[k] != vX: free.append(buf[k])
            if k & 1: free.append(vAF + 4*(k-1))
            while free and nxt < 16 and (nxt - (k+1)) < 7:
                b = free.pop(0); buf[nxt] = b
                bs = vWV0 if nxt < 8 else vWV1
                for u in range(2):
                    e(f"ds_read_b128 {v(b+4*u,4)}, {v(bs)} offset:{(nxt&7)*8192 + u*1024}")
                nxt += 1
            if k == self.spoll_n:
                spolls()
        self.tick(5)
        tt = vB0
        for i in range(4):
            e(f"v_mov_b32 {v(tt+i)}, {v(vACCV+i)}")
        for i in range(4):
            e(f"v_permlane32_swap_b32 {v(tt+i)}, {v(vACCV+i)}")
        for i in range(4):
            e(f"v_add_f32 {v(tt+i)}, {v(tt+i)}, {v(vACCV+i)}")
        e(f"v_cvt_pk_bf16_f32 {v(vVMF)}, {v(tt)}, {v(tt+1)}")
        e(f"v_cvt_pk_bf16_f32 {v(vVMF+1)}, {v(tt+2)}, {v(tt+3)}")
        e(f"s_cmp_eq_u32 {s(sSTEP)}, 63")
        e(f"s_cbranch_scc1 {n}_last")
        e(f"s_branch {n}_sp_w")
        e.label(f"{n}_sp")
        spolls()
        e.label(f"{n}_sp_w")
        e("s_waitcnt vmcnt(0)")
        self.check(range(SP, SP+12), vB0, f"{n}_sp", f"{n}_sp_ok", 2)
        e.label(f"{n}_sp_ok")
        self.tick(6)
        X = vAF
        for i in range(4):
            e(f"v_add_f32 {v(X+i)}, {v(SP+i)}, {v(SP+4+i)}")
        for i in range(2):
            e(f"v_add_f32 {v(X+4+i)}, {v(SP+8+i)}, {v(SP+10+i)}")
        M, t2 = X + 6, X + 7
        e(f"v_max3_f32 {v(M)}, {v(X)}, {v(X+1)}, {v(X+2)}")
        e(f"v_max3_f32 {v(M)}, {v(M)}, {v(X+3)}, {v(X+4)}")
        e(f"v_max_f32 {v(M)}, {v(M)}, {v(X+5)}")
        e(f"v_max_f32_dpp {v(M)}, {v(M)}, {v(M)} row_ror:8 row_mask:0xf bank_mask:0xf")
        e(f"v_mov_b32 {v(t2)}, {v(M)}")
        e(f"v_permlane16_swap_b32 {v(t2)}, {v(M)}")
        e(f"v_max_f32 {v(M)}, {v(M)}, {v(t2)}")
        e(f"v_mov_b32 {v(t2)}, {v(M)}")
        e(f"v_permlane32_swap_b32 {v(t2)}, {v(M)}")
        e(f"v_max_f32 {v(M)}, {v(M)}, {v(t2)}")
        e(f"v_mul_f32 {v(M)}, {s(sC)}, {v(M)}")
        for i in range(6):
            e(f"v_fma_f32 {v(X+i)}, {v(X+i)}, {s(sC)}, -{v(M)}")
        for i in range(6):
            e(f"v_exp_f32 {v(X+i)}, {v(X+i)}")
        PB = X + 8
        PM = X + 12
        e(f"v_cvt_pk_bf16_f32 {v(PB)}, {v(X)}, {v(X+1)}")
        e(f"v_cvt_pk_bf16_f32 {v(PB+1)}, {v(X+2)}, {v(X+3)}")
        e(f"v_cvt_pk_bf16_f32 {v(PM)}, {v(X+4)}, {v(X+5)}")
        e(f"v_mov_b32_dpp {v(PB+2)}, {v(PB)} row_ror:8 row_mask:0xf bank_mask:0xf")
        e(f"v_mov_b32_dpp {v(PB+3)}, {v(PB+1)} row_ror:8 row_mask:0xf bank_mask:0xf")
        e(f"v_mov_b32_dpp {v(PM+1)}, {v(PM)} row_ror:8 row_mask:0xf bank_mask:0xf")
        OD = X + 16
        e(f"v_mfma_f32_16x16x32_bf16 {v(OD,4)}, {v(vX+12,4)}, {v(PB,4)}, 0")
        e(f"v_mfma_f32_16x16x16bf16_1k {v(OD,4)}, {v(vVMF,2)}, {v(PM,2)}, {v(OD,4)}")
        SM = M
        e(f"v_add_f32 {v(SM)}, {v(X)}, {v(X+1)}")
        e(f"v_add_f32 {v(t2)}, {v(X+2)}, {v(X+3)}")
        e(f"v_add_f32 {v(SM)}, {v(SM)}, {v(X+4)}")
        e(f"v_add_f32 {v(t2)}, {v(t2)}, {v(X+5)}")
        e(f"v_add_f32 {v(SM)}, {v(SM)}, {v(t2)}")
        e(f"v_add_f32_dpp {v(SM)}, {v(SM)}, {v(SM)} row_ror:8 row_mask:0xf bank_mask:0xf")
        e(f"v_mov_b32 {v(t2)}, {v(SM)}")
        e(f"v_permlane16_swap_b32 {v(t2)}, {v(SM)}")
        e(f"v_add_f32 {v(SM)}, {v(SM)}, {v(t2)}")
        e(f"v_mov_b32 {v(t2)}, {v(SM)}")
        e(f"v_permlane32_swap_b32 {v(t2)}, {v(SM)}")
        e(f"v_add_f32 {v(SM)}, {v(SM)}, {v(t2)}")
        e(f"v_rcp_f32 {v(SM)}, {v(SM)}")
        for i in range(4):
            e(f"v_mul_f32 {v(OD+i)}, {v(OD+i)}, {v(SM)}")
        e(f"v_cvt_pk_bf16_f32 {v(OD+4)}, {v(OD)}, {v(OD+1)}")
        e(f"v_cvt_pk_bf16_f32 {v(OD+5)}, {v(OD+2)}, {v(OD+3)}")
        e(f"buffer_store_dwordx2 {v(OD+4,2)}, {v(vOW)}, {s(sRING,4)}, {s(sSLOT)} offen{loc}")
        e(f"buffer_store_dwordx2 {v(vVMF,2)}, {v(vVM)}, {s(sKM,4)}, {s(sKMO)} offen")
        self.tick(7)
        OG = 96
        ACC = vB0
        for i in range(8):
            e(f"v_mov_b32 {v(ACC+i)}, 0")
        e.label(f"{n}_og")
        for ks in range(8):
            so = sSLOT if ks < 4 else sSLOT4
            e(f"buffer_load_dwordx4 {v(OG+4*ks,4)}, {v(vOR)}, {s(sRING,4)}, {s(so)} offen offset:{(ks&3)*1024} sc1")
        e("s_waitcnt vmcnt(0)")
        self.check(range(OG, OG+32), vF, f"{n}_og", f"{n}_og_ok", 3)
        e.label(f"{n}_og_ok")
        self.tick(8)
        for ks in range(8):
            for ct in range(2):
                e(f"v_smfmac_f32_16x16x64_bf16 {v(ACC+4*ct,4)}, {v(OG+4*ks,4)}, {v(vWO+(ks*2+ct)*8,8)}, {v(vIDX)}")
        for i in range(4):
            e(f"v_permlane32_swap_b32 {v(ACC+i)}, {v(ACC+4+i)}")
        for i in range(4):
            e(f"v_add_f32 {v(ACC+i)}, {v(ACC+i)}, {v(ACC+4+i)}")
        for i in range(4):
            e(f"ds_write_b32 {v(vRW)}, {v(ACC+i)} offset:{i*144}")
        e("s_waitcnt lgkmcnt(0)")
        e("s_barrier")
        self.tick(9)
        e(f"s_cmp_lg_u32 {s(sWAVE)}, 0")
        e(f"s_cbranch_scc1 {n}_next")
        RB = vAF
        for w in range(4):
            e(f"ds_read_b128 {v(RB+4*w,4)}, {v(vRR)} offset:{w*1152}")
        e("s_waitcnt lgkmcnt(2)")
        for i in range(4):
            e(f"v_add_f32 {v(RB+i)}, {v(RB+i)}, {v(RB+4+i)}")
        e("s_waitcnt lgkmcnt(0)")
        for i in range(4):
            e(f"v_add_f32 {v(RB+8+i)}, {v(RB+8+i)}, {v(RB+12+i)}")
        for i in range(4):
            e(f"v_add_f32 {v(RB+i)}, {v(RB+i)}, {v(RB+8+i)}")
        e(f"v_cvt_pk_bf16_f32 {v(RB+16)}, {v(RB)}, {v(RB+1)}")
        e(f"v_cvt_pk_bf16_f32 {v(RB+17)}, {v(RB+2)}, {v(RB+3)}")
        e(f"buffer_store_dwordx2 {v(RB+16,2)}, {v(vPW)}, {s(sRING,4)}, {s(sNEXT)} offen{loc}")
        e(f"buffer_store_dwordx2 {v(RB+16,2)}, {v(vPW)}, {s(sRING,4)}, {s(sNR)} offen sc1")
        e.label(f"{n}_next")
        self.tick(10)
        e(f"s_add_u32 {s(sSTEP)}, {s(sSTEP)}, 1")
        e(f"s_branch {n}_top")
        e.label(f"{n}_last")
        e(f"buffer_store_dwordx2 {v(vVMF,2)}, {v(vVM)}, {s(sKM,4)}, {s(sKMO)} offen")
        e("s_waitcnt vmcnt(0)")
        e(f"s_branch {self.name}_fin")

    def dump(self):
        if not self.instr: return
        e = self.e; n = self.name
        e(f"s_cmp_lg_u32 {s(sCU)}, {getattr(self,'dump_cu',0)}")
        e(f"s_cbranch_scc1 {n}_nodump")
        e(f"s_cmp_ge_u32 {s(sWAVE)}, 3")
        e(f"s_cbranch_scc1 {n}_nodump")
        e("s_mov_b64 exec, 1")
        e(f"s_mul_i32 {s(sT)}, {s(sWAVE)}, 64")
        e(f"s_add_u32 {s(sT)}, {s(sT)}, 64")
        for i in range(12):
            e(f"v_mov_b32 v64, {s(sT)}")
            e(f"v_mov_b32 v65, {s(sACC+i)}")
            e(f"global_store_dword v64, v65, {s(sDBG,2)} offset:{4*i}")
        for i in range(4):
            e(f"v_mov_b32 v64, {s(sT)}")
            e(f"v_mov_b32 v65, {s(sRET+i)}")
            e(f"global_store_dword v64, v65, {s(sDBG,2)} offset:{48+4*i}")
        e("s_waitcnt vmcnt(0)")
        e.label(f"{n}_nodump")

    def build(self):
        e = self.e; n = self.name; ws = self.ws
        load_ptr(e, sWS, 'ws'); load_ptr(e, sDBG, 'dbg')
        load_ptr(e, sWQ, 'Wq'); load_ptr(e, sWK, 'Wk'); load_ptr(e, sWV, 'Wv'); load_ptr(e, sWO, 'Wo'); load_ptr(e, sM0, 'mem0')
        e("v_lshrrev_b32 v2, 6, v0")
        e(f"v_readfirstlane_b32 {s(sWAVE)}, v2")
        e("s_waitcnt lgkmcnt(0)")
        if self.instr:
            e(f"s_memtime {s(sTM,2)}")
            e("s_waitcnt lgkmcnt(0)")
            e(f"s_mov_b32 {s(sTM+3)}, {s(sTM)}")
            for i in range(14): e(f"s_mov_b32 {s(sACC+i)}, 0")
            for i in range(4): e(f"s_mov_b32 {s(sRET+i)}, 0")
        self.elect()
        srd(e, sRING, sWS, 4 * SLOT, ws.o('ring'))
        srd(e, sKV, sWS, 2 * ws.size('k'), ws.o('k'))
        assert ws.o('vT') == ws.o('k') + ws.size('k') and ws.o('vmT') == ws.o('km') + ws.size('km')
        srd(e, sKM, sWS, 2 * ws.size('km'), ws.o('km'))
        self.addresses()
        self.ring_init()
        self.weights()
        self.init_wait()
        e("s_barrier")
        self.tick(11)
        e(f"s_mov_b32 {s(sSTEP)}, 0")
        e(f"s_mov_b32 {s(sBUD)}, {self.budget}")
        e(f"s_cmp_lg_u32 {s(sMODE)}, 0")
        e(f"s_cbranch_scc1 {n}_s_top")
        self.steps('f')
        self.steps('s')
        e.label(f"{n}_fin")
        self.dump()
        e.label(f"{n}_exit")
        e("s_endpgm")
        return dict(name=n, grid=256, block=256, lds=LDS_BYTES, lines=e.lines, vgprs=256, agprs=256)


def chain_kernel(ws, name='chain_kernel', **kw):
    force_slow = kw.pop('force_slow', False)
    dump_cu = kw.pop('dump_cu', 0)
    nsteps = kw.pop('nsteps', None)
    c = Chain(ws, name, **kw)
    c.force_slow = force_slow; c.dump_cu = dump_cu; c.nsteps = nsteps
    return c.build()
```

```python
from asm import *

NAME = "sequential_preLN__memory_aug_recurrent_mem_tr__glu_gated_glu__prompt"
KA = dict(x=0, mem0=8, Wq=16, Wk=24, Wv=32, Wo=40, wg=64, wu=72, wd=80, out=88, dbg=96, ws=104)
SZ = dict(x=2048*1024*2, mem0=8*1024*2, Wq=1024*4096*2, Wk=1024*4096*2, Wv=1024*4096*2, Wo=4096*1024*2,
          wg=1024*3584*2, wu=1024*3584*2, wd=3584*1024*2, out=2048*1024*2, dbg=256, ws=268435456)

class WS:
    def __init__(self):
        self.off = 0; self.lay = {}
    def alloc(self, name, shape, dt):
        n = 1
        for d in shape: n *= d
        b = n * (2 if dt == 'bf16' else 4)
        self.off = (self.off + 4095) // 4096 * 4096
        self.lay[name] = (self.off, list(shape), dt)
        o = self.off
        self.off += b
        return o
    def o(self, name): return self.lay[name][0]
    def size(self, name):
        off, shape, dt = self.lay[name]
        n = 1
        for d in shape: n *= d
        return n * (2 if dt == 'bf16' else 4)

def load_ptr(e, sd, name):
    e(f"s_load_dwordx2 {s(sd,2)}, s[0:1], {KA[name]}")

def srd(e, sd, sbase, nbytes, off=0):
    if off:
        e(f"s_add_u32 {s(sd)}, {s(sbase)}, {off & 0xffffffff}")
        e(f"s_addc_u32 {s(sd+1)}, {s(sbase+1)}, {off >> 32}")
    else:
        e(f"s_mov_b32 {s(sd)}, {s(sbase)}")
        e(f"s_mov_b32 {s(sd+1)}, {s(sbase+1)}")
    e(f"s_mov_b32 {s(sd+2)}, {nbytes}")
    e(f"s_mov_b32 {s(sd+3)}, 0x20000")

def wave_allreduce_add(e, x, t):
    e(f"v_add_f32_dpp {v(x)}, {v(x)}, {v(x)} quad_perm:[1,0,3,2] row_mask:0xf bank_mask:0xf")
    e(f"v_add_f32_dpp {v(x)}, {v(x)}, {v(x)} quad_perm:[2,3,0,1] row_mask:0xf bank_mask:0xf")
    e(f"v_add_f32_dpp {v(x)}, {v(x)}, {v(x)} row_half_mirror row_mask:0xf bank_mask:0xf")
    e(f"v_add_f32_dpp {v(x)}, {v(x)}, {v(x)} row_mirror row_mask:0xf bank_mask:0xf")
    e(f"v_mov_b32 {v(t)}, {v(x)}")
    e(f"v_permlane16_swap_b32 {v(t)}, {v(x)}")
    e(f"v_add_f32 {v(x)}, {v(x)}, {v(t)}")
    e(f"v_mov_b32 {v(t)}, {v(x)}")
    e(f"v_permlane32_swap_b32 {v(t)}, {v(x)}")
    e(f"v_add_f32 {v(x)}, {v(x)}, {v(t)}")

def kernel_header(name):
    return [f".globl {name}", ".p2align 8", f".type {name},@function", f"{name}:"]

def kernel_desc(name, vgprs, agprs=0, sgprs=102, y=False):
    acc = (vgprs + 3) // 4 * 4
    tot = acc + agprs if agprs else vgprs
    L = [f".amdhsa_kernel {name}",
         f"  .amdhsa_next_free_vgpr {tot}",
         f"  .amdhsa_next_free_sgpr {sgprs}",
         f"  .amdhsa_accum_offset {acc}",
         "  .amdhsa_group_segment_fixed_size 0",
         "  .amdhsa_kernarg_size 112",
         "  .amdhsa_user_sgpr_count 2",
         "  .amdhsa_user_sgpr_kernarg_segment_ptr 1",
         "  .amdhsa_system_sgpr_workgroup_id_x 1"]
    if y: L.append("  .amdhsa_system_sgpr_workgroup_id_y 1")
    L.append(".end_amdhsa_kernel")
    return L

def build(kernels, header_comment):
    out = list(header_comment)
    for k in kernels:
        if k.get('launch', True):
            out.append(f"; @launch kernel={k['name']} grid=({k['grid']},1,1) block=({k['block']},1,1) lds={k['lds']}")
    out.append('.amdgcn_target "amdgcn-amd-amdhsa--gfx950"')
    out.append('.text')
    seen = set()
    allprob = []
    for k in kernels:
        if k['name'] in seen: continue
        seen.add(k['name'])
        lines, prob = Asm.fix(k['lines'])
        allprob += [(k['name'],) + p for p in prob]
        out += kernel_header(k['name'])
        out += ["    " + l if not l.endswith(':') else l for l in lines]
    out.append('.section .rodata,"a"')
    seen = set()
    for k in kernels:
        if k['name'] in seen: continue
        seen.add(k['name'])
        out.append('.p2align 6')
        out += kernel_desc(k['name'], k['vgprs'], k.get('agprs', 0))
    return "\n".join(out) + "\n", allprob


def stamp(e, i):
    e(f"s_memtime {s(64+2*i,2)}")
    e("s_waitcnt lgkmcnt(0)")

def dump_stamps(e, n, cond_sgpr, val, tag, dbg_off=0):
    skip = tag + "_nostamp"
    e(f"s_cmp_lg_u32 {s(cond_sgpr)}, {val}")
    e(f"s_cbranch_scc1 {skip}")
    e(f"s_load_dwordx2 s[96:97], s[0:1], {KA['dbg']}")
    e("s_waitcnt lgkmcnt(0)")
    e("s_mov_b32 s98, 256"); e("s_mov_b32 s99, 0x20000")
    e("v_cmp_eq_u32 vcc, 0, v0")
    e("s_and_saveexec_b64 s[94:95], vcc")
    for i in range(n):
        e(f"s_sub_u32 s93, {s(64+2*i)}, s64")
        e(f"v_mov_b32 v1, s93")
        e(f"v_mov_b32 v2, {dbg_off + 4*i}")
        e(f"buffer_store_dword v1, v2, s[96:99], 0 offen")
    e("s_waitcnt vmcnt(0)")
    e("s_mov_b64 exec, s[94:95]")
    e.label(skip)
```

```python
from common import *

class G:
    sX = 20; sW0 = 24; sW1 = 28; sC = 32; sR = 36
    sKX = 40; sKW = 41; sLX = 42; sLW = 43; sCnt = 44; sDelta = 45; sWave = 46; sT = 47
    sCoff = 54; sRoff = 55
    vLane = 1
    vXa = 2; vWa = 6; vXg = 10; vWg = 18
    vT = 26
    XF = 32; WF = 64
    vE = 96

    def __init__(self, BM, BN, K, lda, ldb, nsub=1, lds_base=0):
        self.BM, self.BN, self.K, self.lda, self.ldb, self.nsub = BM, BN, K, lda, ldb, nsub
        self.WM, self.WN = BM // 2, BN // 2
        self.MT, self.NT = self.WM // 32, self.WN // 32
        self.nk = K // 64
        self.xbytes = BM * 128
        self.BNs = BN // nsub
        self.subbytes = 64 * self.BNs * 2
        self.stage = self.xbytes + 64 * BN * 2
        self.nX = BM // 32
        self.nW = BN // 32
        self.lds_base = lds_base
        self.swap = False
        self.aux = ""
        self.lds = lds_base + 2 * self.stage
        assert self.BNs in (128, 256)

    def acc(self, mt, nt):
        return (nt * self.MT + mt) * 16

    def setup(self, e):
        g = self
        T = g.vT
        e(f"v_lshrrev_b32 {v(T)}, 6, v0")
        e(f"v_and_b32 {v(g.vLane)}, 63, v0")
        e(f"v_readfirstlane_b32 {s(g.sWave)}, {v(T)}")
        g.setup_addr(e)

    def setup_addr(self, e):
        g = self
        T = g.vT; L = g.vLane
        e(f"s_lshr_b32 {s(g.sT)}, {s(g.sWave)}, 1")
        e(f"s_and_b32 {s(g.sT+1)}, {s(g.sWave)}, 1")
        e(f"v_and_b32 {v(T)}, 31, {v(L)}")
        e(f"s_mul_i32 {s(g.sT+2)}, {s(g.sT)}, {g.WM}")
        e(f"v_add_u32 {v(T)}, {s(g.sT+2)}, {v(T)}")
        e(f"v_lshrrev_b32 {v(T+1)}, 1, {v(T)}")
        e(f"v_and_b32 {v(T+1)}, 7, {v(T+1)}")
        e(f"v_lshrrev_b32 {v(T+2)}, 5, {v(L)}")
        e(f"v_lshlrev_b32 {v(T+3)}, 7, {v(T)}")
        if g.lds_base:
            e(f"v_add_u32 {v(T+3)}, {g.lds_base}, {v(T+3)}")
        for kk in range(4):
            e(f"v_add_u32 {v(T+4)}, {2*kk}, {v(T+2)}")
            e(f"v_xor_b32 {v(T+4)}, {v(T+4)}, {v(T+1)}")
            e(f"v_lshl_add_u32 {v(g.vXa+kk)}, {v(T+4)}, 4, {v(T+3)}")
        rowb = g.BNs * 2
        e(f"v_lshrrev_b32 {v(T)}, 2, {v(L)}")
        e(f"v_and_b32 {v(T)}, 3, {v(T)}")
        e(f"v_lshrrev_b32 {v(T+1)}, 5, {v(L)}")
        e(f"v_lshl_add_u32 {v(T+1)}, {v(T+1)}, 3, {v(T)}")
        e(f"v_mul_u32_u24 {v(T+1)}, {rowb}, {v(T+1)}")
        e(f"v_lshrrev_b32 {v(T+2)}, 4, {v(L)}")
        e(f"v_and_b32 {v(T+2)}, 1, {v(T+2)}")
        e(f"v_lshlrev_b32 {v(T+2)}, 5, {v(T+2)}")
        e(f"v_and_b32 {v(T+3)}, 3, {v(L)}")
        e(f"v_lshl_add_u32 {v(T+2)}, {v(T+3)}, 3, {v(T+2)}")
        e(f"v_add_u32 {v(T+1)}, {v(T+1)}, {v(T+2)}")
        for nt in range(g.NT):
            if g.nsub == 1:
                sub = 0; per = g.NT; tl = nt
            else:
                sub = nt % 2; per = g.NT // 2; tl = nt // 2
            e(f"s_mul_i32 {s(g.sT+2)}, {s(g.sT+1)}, {per}")
            e(f"s_add_u32 {s(g.sT+2)}, {s(g.sT+2)}, {tl}")
            e(f"v_xor_b32 {v(T+3)}, {s(g.sT+2)}, {v(T)}")
            e(f"v_lshlrev_b32 {v(T+3)}, 6, {v(T+3)}")
            e(f"v_add_u32 {v(T+3)}, {v(T+3)}, {v(T+1)}")
            e(f"v_add_u32 {v(g.vWa+nt)}, {g.lds_base + g.xbytes + sub*g.subbytes}, {v(T+3)}")
        e(f"v_lshrrev_b32 {v(T)}, 3, {v(L)}")
        e(f"s_mul_i32 {s(g.sT+2)}, {s(g.sWave)}, {g.nX*8}")
        e(f"v_add_u32 {v(T)}, {s(g.sT+2)}, {v(T)}")
        e(f"v_and_b32 {v(T+1)}, 7, {v(L)}")
        e(f"s_mov_b32 {s(g.sT+3)}, {g.lda}")
        for j in range(g.nX):
            e(f"v_add_u32 {v(T+2)}, {8*j}, {v(T)}")
            e(f"v_lshrrev_b32 {v(T+3)}, 1, {v(T+2)}")
            e(f"v_and_b32 {v(T+3)}, 7, {v(T+3)}")
            e(f"v_xor_b32 {v(T+3)}, {v(T+3)}, {v(T+1)}")
            e(f"v_lshlrev_b32 {v(T+3)}, 4, {v(T+3)}")
            e(f"v_mul_lo_u32 {v(T+2)}, {v(T+2)}, {s(g.sT+3)}")
            e(f"v_add_u32 {v(g.vXg+j)}, {v(T+2)}, {v(T+3)}")
        nWs = g.nW // g.nsub
        cpr = g.BNs * 2 // 16
        rpi = 64 // cpr
        sh = {16: 4, 32: 5}[cpr]
        e(f"v_lshrrev_b32 {v(T)}, {sh}, {v(L)}")
        e(f"s_mul_i32 {s(g.sT+2)}, {s(g.sWave)}, {nWs*rpi}")
        e(f"v_add_u32 {v(T)}, {s(g.sT+2)}, {v(T)}")
        e(f"v_and_b32 {v(T+1)}, {cpr-1}, {v(L)}")
        e(f"s_mov_b32 {s(g.sT+3)}, {g.ldb}")
        for j in range(nWs):
            e(f"v_add_u32 {v(T+2)}, {rpi*j}, {v(T)}")
            e(f"v_and_b32 {v(T+3)}, 3, {v(T+2)}")
            e(f"v_lshlrev_b32 {v(T+3)}, 2, {v(T+3)}")
            e(f"v_xor_b32 {v(T+3)}, {v(T+3)}, {v(T+1)}")
            e(f"v_lshlrev_b32 {v(T+3)}, 4, {v(T+3)}")
            e(f"v_mul_lo_u32 {v(T+2)}, {v(T+2)}, {s(g.sT+3)}")
            e(f"v_add_u32 {v(g.vWg+j)}, {v(T+2)}, {v(T+3)}")

    def dma_ops(self):
        g = self
        ops = []
        for j in range(g.nX):
            ops.append([f"s_add_u32 m0, {s(g.sLX)}, {j*1024}",
                        f"buffer_load_dwordx4 {v(g.vXg+j)}, {s(g.sX,4)}, {s(g.sKX)} offen lds"])
        nWs = g.nW // g.nsub
        for sub in range(g.nsub):
            for j in range(nWs):
                srd_ = g.sW0 if sub == 0 else g.sW1
                ops.append([f"s_add_u32 m0, {s(g.sLW)}, {sub*g.subbytes + j*1024}",
                            f"buffer_load_dwordx4 {v(g.vWg+j)}, {s(srd_,4)}, {s(g.sKW)} offen lds"])
        return ops

    def dma_advance(self):
        g = self
        return [f"s_add_u32 {s(g.sKX)}, {s(g.sKX)}, 128",
                f"s_add_u32 {s(g.sKW)}, {s(g.sKW)}, {64*g.ldb}",
                f"s_add_u32 {s(g.sLX)}, {s(g.sLX)}, {s(g.sDelta)}",
                f"s_add_u32 {s(g.sLW)}, {s(g.sLW)}, {s(g.sDelta)}",
                f"s_sub_u32 {s(g.sDelta)}, 0, {s(g.sDelta)}"]

    def frag_reads(self, kk, buf):
        g = self
        r = []
        rowb = g.BNs * 2
        xs = [f"ds_read_b128 {v(g.XF+buf*16+mt*4,4)}, {v(g.vXa+kk)} offset:{mt*4096}" for mt in range(g.MT)]
        wsr = []
        for nt in range(g.NT):
            d = g.WF + buf*16 + nt*4
            wsr.append(f"ds_read_b64_tr_b16 {v(d,2)}, {v(g.vWa+nt)} offset:{kk*16*rowb}")
            wsr.append(f"ds_read_b64_tr_b16 {v(d+2,2)}, {v(g.vWa+nt)} offset:{(kk*16+4)*rowb}")
        r = wsr[:2] + xs + wsr[2:]
        return r

    def mfmas(self, buf, first=False):
        g = self
        out = []
        for nt in range(g.NT):
            for mt in range(g.MT):
                d = g.acc(mt, nt)
                c = "0" if first else a(d, 16)
                A_, B_ = v(g.WF+buf*16+nt*4,4), v(g.XF+buf*16+mt*4,4)
                if g.swap: A_, B_ = B_, A_
                out.append(f"v_mfma_f32_32x32x16_bf16 {a(d,16)}, {A_}, {B_}, {c}")
        return out

    def interleave(self, e, mf, fillers, start=0):
        n = len(mf) - start
        per = [[] for _ in mf]
        if fillers:
            for i, f in enumerate(fillers):
                per[start + min(n - 1, i * n // len(fillers))] += f if isinstance(f, list) else [f]
        for i, m in enumerate(mf):
            e(m)
            for f in per[i]:
                e(f)

    def toggle_reads(self):
        g = self
        r = [f"v_add_u32 {v(g.vXa+k)}, {s(g.sT+5)}, {v(g.vXa+k)}" for k in range(4)]
        r += [f"v_add_u32 {v(g.vWa+k)}, {s(g.sT+5)}, {v(g.vWa+k)}" for k in range(g.NT)]
        r += [f"s_sub_u32 {s(g.sT+5)}, 0, {s(g.sT+5)}"]
        return r

    def iteration(self, e, first, dma2, has_next, dma1):
        g = self
        ops = g.dma_ops()
        h = len(ops) // 2
        xo, wo = ops[:g.nX], ops[g.nX:]
        first_half = xo[:len(xo)//2] + wo[:len(wo)//2]
        second_half = xo[len(xo)//2:] + wo[len(wo)//2:]
        def mix(reads, dm):
            out = []
            n = max(len(reads), len(dm))
            tot = len(reads) + len(dm)
            ri = di = 0
            for i in range(tot):
                if di >= len(dm) or (ri < len(reads) and ri * len(dm) <= di * len(reads)):
                    out.append([reads[ri]]); ri += 1
                else:
                    out.append(dm[di]); di += 1
            return out
        e("s_waitcnt lgkmcnt(0)")
        fl = mix(g.frag_reads(1, 1), second_half if dma2 else [])
        if dma2: fl.append(g.dma_advance())
        g.interleave(e, g.mfmas(0, first), fl)
        e("s_waitcnt lgkmcnt(0)")
        g.interleave(e, g.mfmas(1), [[x] for x in g.frag_reads(2, 0)])
        e("s_waitcnt lgkmcnt(0)")
        fl = [[x] for x in g.frag_reads(3, 1)]
        if has_next: fl.append(g.toggle_reads())
        g.interleave(e, g.mfmas(0), fl)
        if has_next:
            e("s_waitcnt vmcnt(0) lgkmcnt(0)")
            mf = g.mfmas(1)
            e(mf[0])
            e("s_barrier")
            fl = mix(g.frag_reads(0, 0), first_half if dma1 else [])
            g.interleave(e, mf[1:], fl)
        else:
            e("s_waitcnt lgkmcnt(0)")
            g.interleave(e, g.mfmas(1), [])

    def mainloop(self, e, tag):
        g = self
        w = g.sWave
        e(f"s_mul_i32 {s(g.sLX)}, {s(w)}, {g.nX*1024}")
        if g.lds_base: e(f"s_add_u32 {s(g.sLX)}, {s(g.sLX)}, {g.lds_base}")
        e(f"s_mul_i32 {s(g.sLW)}, {s(w)}, {(g.nW//g.nsub)*1024}")
        e(f"s_add_u32 {s(g.sLW)}, {s(g.sLW)}, {g.lds_base + g.xbytes}")
        e(f"s_mov_b32 {s(g.sDelta)}, {g.stage}")
        e(f"s_mov_b32 {s(g.sT+5)}, {g.stage}")
        for t in range(2):
            for op in g.dma_ops():
                for x in op: e(x)
            for x in g.dma_advance(): e(x)
        e(f"s_waitcnt vmcnt({g.nX + g.nW})")
        e("s_barrier")
        for x in g.frag_reads(0, 0): e(x)
        nk = g.nk
        assert nk >= 4 and nk % 2 == 0
        g.iteration(e, True, False, True, True)
        loop = f"{tag}_loop"
        e(f"s_mov_b32 {s(g.sCnt)}, {nk-3}")
        e.label(loop)
        g.iteration(e, False, True, True, True)
        e(f"s_sub_u32 {s(g.sCnt)}, {s(g.sCnt)}, 1")
        e(f"s_cmp_lg_u32 {s(g.sCnt)}, 0")
        e(f"s_cbranch_scc1 {loop}")
        g.iteration(e, False, True, True, False)
        g.iteration(e, False, False, False, False)
        for x in g.toggle_reads(): e(x)

    def epi_addr(self, e, ldc, vA):
        g = self
        T = g.vT; L = g.vLane
        e(f"s_lshr_b32 {s(g.sT)}, {s(g.sWave)}, 1")
        e(f"s_and_b32 {s(g.sT+1)}, {s(g.sWave)}, 1")
        e(f"s_mul_i32 {s(g.sT)}, {s(g.sT)}, {g.WM}")
        e(f"v_and_b32 {v(T)}, 31, {v(L)}")
        e(f"v_add_u32 {v(T)}, {s(g.sT)}, {v(T)}")
        e(f"s_mov_b32 {s(g.sT+2)}, {ldc}")
        e(f"v_mul_lo_u32 {v(T)}, {v(T)}, {s(g.sT+2)}")
        e(f"v_lshrrev_b32 {v(T+1)}, 5, {v(L)}")
        e(f"v_lshlrev_b32 {v(T+1)}, 4, {v(T+1)}")
        e(f"s_mul_i32 {s(g.sT+1)}, {s(g.sT+1)}, {g.WNout*2}")
        e(f"v_add_u32 {v(T+1)}, {s(g.sT+1)}, {v(T+1)}")
        e(f"v_add_u32 {v(vA)}, {v(T)}, {v(T+1)}")

    def epi_store(self, e, ldc, resid=False, ldr=None):
        g = self
        g.WNout = g.WN
        A = g.vE
        g.epi_addr(e, ldc, A)
        F = g.vE + 2
        for mt in range(g.MT):
            e(f"s_add_u32 {s(g.sT+3)}, {s(g.sCoff)}, {mt*32*ldc}")
            if resid:
                e(f"s_add_u32 {s(g.sT+4)}, {s(g.sRoff)}, {mt*32*ldc}")
                RB = g.vE + 64
                for nt in range(g.NT):
                    for hq in range(2):
                        e(f"buffer_load_dwordx4 {v(RB+(nt*2+hq)*4,4)}, {v(A)}, {s(g.sR,4)}, {s(g.sT+4)} offen offset:{nt*64+hq*32}")
            for nt in range(g.NT):
                sl = (nt % 2)
                Fb = F + sl * 28
                P = Fb + 16
                d = g.acc(mt, nt)
                for i in range(16):
                    e(f"v_accvgpr_read_b32 {v(Fb+i)}, {a(d+i)}")
                if resid:
                    if nt == 0: e("s_waitcnt vmcnt(0)")
                    RB = g.vE + 64 + nt * 8
                    for hq in range(2):
                        e(f"v_permlane32_swap_b32 {v(RB+hq*4+0)}, {v(RB+hq*4+2)}")
                        e(f"v_permlane32_swap_b32 {v(RB+hq*4+1)}, {v(RB+hq*4+3)}")
                    tmp = g.vT
                    for i in range(8):
                        e(f"v_lshlrev_b32 {v(tmp)}, 16, {v(RB+i)}")
                        e(f"v_and_b32 {v(tmp+1)}, 0xffff0000, {v(RB+i)}")
                        e(f"v_add_f32 {v(Fb+2*i)}, {v(Fb+2*i)}, {v(tmp)}")
                        e(f"v_add_f32 {v(Fb+2*i+1)}, {v(Fb+2*i+1)}, {v(tmp+1)}")
                for i in range(8):
                    e(f"v_cvt_pk_bf16_f32 {v(P+i)}, {v(Fb+2*i)}, {v(Fb+2*i+1)}")
                for hq in range(2):
                    e(f"v_permlane32_swap_b32 {v(P+hq*4+0)}, {v(P+hq*4+2)}")
                    e(f"v_permlane32_swap_b32 {v(P+hq*4+1)}, {v(P+hq*4+3)}")
                for hq in range(2):
                    e(f"buffer_store_dwordx4 {v(P+hq*4,4)}, {v(A)}, {s(g.sC,4)}, {s(g.sT+3)} offen offset:{nt*64+hq*32}{g.aux}")

    def epi_vt(self, e):
        g = self
        T = g.vT; L = g.vLane
        A = g.vE
        e(f"s_lshr_b32 {s(g.sT)}, {s(g.sWave)}, 1")
        e(f"s_and_b32 {s(g.sT+1)}, {s(g.sWave)}, 1")
        e(f"s_mul_i32 {s(g.sT)}, {s(g.sT)}, {g.MT*262144}")
        e(f"s_mul_i32 {s(g.sT+1)}, {s(g.sT+1)}, {g.WN*64}")
        e(f"s_add_u32 {s(g.sT)}, {s(g.sT)}, {s(g.sT+1)}")
        e(f"s_add_u32 {s(g.sT)}, {s(g.sT)}, {s(g.sCoff)}")
        e(f"v_and_b32 {v(T)}, 31, {v(L)}")
        e(f"v_lshrrev_b32 {v(T+1)}, 5, {v(L)}")
        e(f"v_lshlrev_b32 {v(T+1)}, 4, {v(T+1)}")
        e(f"v_lshl_add_u32 {v(A)}, {v(T)}, 6, {v(T+1)}")
        F = g.vE + 2
        cnt = 0
        for mt in range(g.MT):
            for nt in range(g.NT):
                e(f"s_add_u32 {s(g.sT+3)}, {s(g.sT)}, {mt*262144 + nt*2048}")
                sl = cnt % 2; cnt += 1
                Fb = F + sl * 28
                P = Fb + 16
                d = g.acc(mt, nt)
                for i in range(16):
                    e(f"v_accvgpr_read_b32 {v(Fb+i)}, {a(d+i)}")
                for i in range(8):
                    e(f"v_cvt_pk_bf16_f32 {v(P+i)}, {v(Fb+2*i)}, {v(Fb+2*i+1)}")
                for hq in range(2):
                    e(f"v_permlane32_swap_b32 {v(P+hq*4+0)}, {v(P+hq*4+2)}")
                    e(f"v_permlane32_swap_b32 {v(P+hq*4+1)}, {v(P+hq*4+3)}")
                for hq in range(2):
                    e(f"buffer_store_dwordx4 {v(P+hq*4,4)}, {v(A)}, {s(g.sC,4)}, {s(g.sT+3)} offen offset:{hq*32}{g.aux}")

    def epi_glu(self, e, ldc):
        g = self
        g.WNout = g.WN // 2
        A = g.vE
        g.epi_addr(e, ldc, A)
        F = g.vE + 2
        e(f"s_mov_b32 {s(g.sT+4)}, 0xbfb8aa3b")
        cnt = 0
        for mt in range(g.MT):
            e(f"s_add_u32 {s(g.sT+3)}, {s(g.sCoff)}, {mt*32*ldc}")
            for pr in range(g.NT // 2):
                sl = cnt % 2; cnt += 1
                Fb = F + sl * 44
                Ub = Fb + 16
                P = Fb + 32
                dg = g.acc(mt, 2*pr); du = g.acc(mt, 2*pr+1)
                for i in range(16):
                    e(f"v_accvgpr_read_b32 {v(Fb+i)}, {a(dg+i)}")
                for i in range(16):
                    e(f"v_mul_f32 {v(Fb+i)}, {s(g.sT+4)}, {v(Fb+i)}")
                for i in range(16):
                    e(f"v_exp_f32 {v(Fb+i)}, {v(Fb+i)}")
                for i in range(16):
                    e(f"v_accvgpr_read_b32 {v(Ub+i)}, {a(du+i)}")
                for i in range(16):
                    e(f"v_add_f32 {v(Fb+i)}, 1.0, {v(Fb+i)}")
                for i in range(16):
                    e(f"v_rcp_f32 {v(Fb+i)}, {v(Fb+i)}")
                for i in range(16):
                    e(f"v_mul_f32 {v(Fb+i)}, {v(Fb+i)}, {v(Ub+i)}")
                for i in range(8):
                    e(f"v_cvt_pk_bf16_f32 {v(P+i)}, {v(Fb+2*i)}, {v(Fb+2*i+1)}")
                for hq in range(2):
                    e(f"v_permlane32_swap_b32 {v(P+hq*4+0)}, {v(P+hq*4+2)}")
                    e(f"v_permlane32_swap_b32 {v(P+hq*4+1)}, {v(P+hq*4+3)}")
                for hq in range(2):
                    e(f"buffer_store_dwordx4 {v(P+hq*4,4)}, {v(A)}, {s(g.sC,4)}, {s(g.sT+3)} offen offset:{pr*64+hq*32}{g.aux}")
```

```python
from common import *

def ln_rows(e, sSrc, sDst, vrow_off, T):
    d = T
    f = T + 8
    acc = T + 24; t = T + 25; o = T + 26
    e(f"buffer_load_dwordx4 {v(d,4)}, {v(vrow_off)}, {s(sSrc,4)}, 0 offen")
    e(f"buffer_load_dwordx4 {v(d+4,4)}, {v(vrow_off)}, {s(sSrc,4)}, 0 offen offset:1024")
    e("s_waitcnt vmcnt(0)")
    for i in range(8):
        e(f"v_lshlrev_b32 {v(f+2*i)}, 16, {v(d+i)}")
        e(f"v_and_b32 {v(f+2*i+1)}, 0xffff0000, {v(d+i)}")
    e(f"v_add_f32 {v(acc)}, {v(f)}, {v(f+1)}")
    for i in range(2, 16):
        e(f"v_add_f32 {v(acc)}, {v(acc)}, {v(f+i)}")
    wave_allreduce_add(e, acc, t)
    e(f"v_mul_f32 {v(acc)}, 0x3a800000, {v(acc)}")
    for i in range(16):
        e(f"v_sub_f32 {v(f+i)}, {v(f+i)}, {v(acc)}")
    e(f"v_mul_f32 {v(acc)}, {v(f)}, {v(f)}")
    for i in range(1, 16):
        e(f"v_fmac_f32 {v(acc)}, {v(f+i)}, {v(f+i)}")
    wave_allreduce_add(e, acc, t)
    e(f"v_mov_b32 {v(t)}, 0x3727c5ac")
    e(f"v_fmac_f32 {v(t)}, 0x3a800000, {v(acc)}")
    e(f"v_rsq_f32 {v(t)}, {v(t)}")
    for i in range(16):
        e(f"v_mul_f32 {v(f+i)}, {v(f+i)}, {v(t)}")
    for i in range(8):
        e(f"v_cvt_pk_bf16_f32 {v(o+i)}, {v(f+2*i)}, {v(f+2*i+1)}")
    e(f"buffer_store_dwordx4 {v(o,4)}, {v(vrow_off)}, {s(sDst,4)}, 0 offen")
    e(f"buffer_store_dwordx4 {v(o+4,4)}, {v(vrow_off)}, {s(sDst,4)}, 0 offen offset:1024")

def ln_kernel(name, src, dst, ws):
    e = Asm()
    done = name + "_done"
    e(f"s_cmp_ge_u32 s2, 512")
    e(f"s_cbranch_scc1 {done}")
    load_ptr(e, 4, src[0]); load_ptr(e, 6, dst[0])
    e("v_lshrrev_b32 v1, 6, v0")
    e("v_and_b32 v2, 63, v0")
    e("s_lshl_b32 s3, s2, 2")
    e("v_add_u32 v1, s3, v1")
    e("v_lshlrev_b32 v1, 11, v1")
    e("v_lshlrev_b32 v2, 4, v2")
    e("v_add_u32 v1, v1, v2")
    e("s_waitcnt lgkmcnt(0)")
    srd(e, 8, 4, 2048*2048, src[1])
    srd(e, 12, 6, 2048*2048, dst[1])
    ln_rows(e, 8, 12, 1, 4)
    e("s_waitcnt vmcnt(0)")
    e.label(done)
    e("s_endpgm")
    return dict(name=name, grid=512, block=256, lds=0, lines=e.lines, vgprs=48)
```

```python
from common import *

C_SCALE = 128 ** -0.5 * 1.4426950408889634
MASK_RAW = -1.0e9 * (128 ** 0.5)

import struct
def f2u(x):
    return struct.unpack('<I', struct.pack('<f', x))[0]

class XA:
    def __init__(self, sQ, sK, sVT, sKM, sVMT, sO, sSeg, sHead, sT, vLane, vbase=16, aux=""):
        self.__dict__.update(locals())

    def setup(self, e):
        g = self; L = g.vLane; B = g.vbase
        g.vQ, g.vK, g.vKM, g.vVT, g.vVMT, g.vD = B, B+1, B+2, B+3, B+4, B+5
        t0, t1, t2 = B+6, B+7, B+8
        e(f"v_and_b32 {v(t0)}, 31, {v(L)}")
        e(f"v_lshrrev_b32 {v(t1)}, 5, {v(L)}")
        e(f"v_lshlrev_b32 {v(t2)}, 4, {v(t1)}")
        e(f"v_lshl_add_u32 {v(g.vQ)}, {v(t0)}, 13, {v(t2)}")
        e(f"v_lshl_add_u32 {v(g.vVT)}, {v(t0)}, 6, {v(t2)}")
        e(f"v_lshlrev_b32 {v(g.vD)}, 3, {v(t1)}")
        e(f"v_sub_u32 {v(g.vD)}, {v(t0)}, {v(g.vD)}")
        e(f"v_lshlrev_b32 {v(g.vVMT)}, 3, {v(t1)}")
        e(f"v_lshl_add_u32 {v(g.vVMT)}, {v(t0)}, 4, {v(g.vVMT)}")
        e(f"v_and_b32 {v(g.vKM)}, 7, {v(L)}")
        e(f"v_lshl_add_u32 {v(g.vKM)}, {v(g.vKM)}, 13, {v(t2)}")
        e(f"v_and_b32 {v(g.vK)}, 0x13, {v(t0)}")
        e(f"v_and_b32 {v(t1)}, 4, {v(t0)}")
        e(f"v_lshl_or_b32 {v(g.vK)}, {v(t1)}, 1, {v(g.vK)}")
        e(f"v_and_b32 {v(t1)}, 8, {v(t0)}")
        e(f"v_lshrrev_b32 {v(t1)}, 1, {v(t1)}")
        e(f"v_or_b32 {v(g.vK)}, {v(g.vK)}, {v(t1)}")
        e(f"v_lshl_add_u32 {v(g.vK)}, {v(g.vK)}, 13, {v(t2)}")

    def task(self, e, R=32):
        g = self; T = g.sT; aux = g.aux
        QF = R; KF = R + 32; MF = R + 64; VF = R + 96; VM = R + 128
        S = R + 136; SM = R + 152
        O = QF
        t = R + 168
        e(f"s_lshl_b32 {s(T)}, {s(g.sSeg)}, 18")
        e(f"s_lshl_b32 {s(T+1)}, {s(g.sHead)}, 8")
        e(f"s_add_u32 {s(T)}, {s(T)}, {s(T+1)}")
        e(f"s_lshl_b32 {s(T+2)}, {s(g.sSeg)}, 16")
        e(f"s_add_u32 {s(T+2)}, {s(T+2)}, {s(T+1)}")
        e(f"s_lshl_b32 {s(T+3)}, {s(g.sSeg)}, 18")
        e(f"s_lshl_b32 {s(T+4)}, {s(g.sHead)}, 13")
        e(f"s_add_u32 {s(T+3)}, {s(T+3)}, {s(T+4)}")
        e(f"s_add_u32 {s(T+4)}, {s(T+3)}, 4096")
        e(f"s_lshl_b32 {s(T+5)}, {s(g.sSeg)}, 16")
        e(f"s_lshl_b32 {s(T+6)}, {s(g.sHead)}, 11")
        e(f"s_add_u32 {s(T+5)}, {s(T+5)}, {s(T+6)}")
        for ks in range(8):
            e(f"buffer_load_dwordx4 {v(KF+4*ks,4)}, {v(g.vK)}, {s(g.sK,4)}, {s(T)} offen offset:{ks*32}{aux}")
            e(f"buffer_load_dwordx4 {v(QF+4*ks,4)}, {v(g.vQ)}, {s(g.sQ,4)}, {s(T)} offen offset:{ks*32}{aux}")
        for ks in range(8):
            e(f"buffer_load_dwordx4 {v(MF+4*ks,4)}, {v(g.vKM)}, {s(g.sKM,4)}, {s(T+2)} offen offset:{ks*32}{aux}")
        for tl in range(4):
            for c in range(2):
                so = T+3 if tl < 2 else T+4
                e(f"buffer_load_dwordx4 {v(VF+(tl*2+c)*4,4)}, {v(g.vVT)}, {s(g.sVT,4)}, {s(so)} offen offset:{(tl&1)*2048+c*32}{aux}")
        for tl in range(4):
            e(f"buffer_load_dwordx2 {v(VM+2*tl,2)}, {v(g.vVMT)}, {s(g.sVMT,4)}, {s(T+5)} offen offset:{tl*512}{aux}")
        for ks in range(8):
            e(f"s_waitcnt vmcnt({20 + 2*(7-ks)})")
            e(f"v_mfma_f32_32x32x16_bf16 {v(S,16)}, {v(KF+4*ks,4)}, {v(QF+4*ks,4)}, {'0' if ks == 0 else v(S,16)}")
        for ks in range(8):
            e(f"s_waitcnt vmcnt({12 + (7-ks)})")
            e(f"v_mfma_f32_32x32x16_bf16 {v(SM,16)}, {v(MF+4*ks,4)}, {v(QF+4*ks,4)}, {'0' if ks == 0 else v(SM,16)}")
        e(f"v_mov_b32 {v(t)}, {hex(f2u(MASK_RAW))}")
        for i in range(16):
            kc = 16*(i >> 3) + (i & 7)
            e(f"v_cmp_gt_i32 vcc, {kc}, {v(g.vD)}")
            e(f"v_cndmask_b32 {v(S+i)}, {v(S+i)}, {v(t)}, vcc")
        m = t + 1; t2 = t + 2
        e(f"v_max3_f32 {v(m)}, {v(S)}, {v(S+1)}, {v(S+2)}")
        for i in range(3, 15, 2):
            e(f"v_max3_f32 {v(m)}, {v(m)}, {v(S+i)}, {v(S+i+1)}")
        e(f"v_max3_f32 {v(m)}, {v(m)}, {v(S+15)}, {v(SM)}")
        e(f"v_max3_f32 {v(m)}, {v(m)}, {v(SM+1)}, {v(SM+2)}")
        e(f"v_max_f32 {v(m)}, {v(m)}, {v(SM+3)}")
        e(f"v_mov_b32 {v(t2)}, {v(m)}")
        e(f"v_permlane32_swap_b32 {v(t2)}, {v(m)}")
        e(f"v_max_f32 {v(m)}, {v(m)}, {v(t2)}")
        e(f"s_mov_b32 {s(T+6)}, {hex(f2u(C_SCALE))}")
        e(f"v_mul_f32 {v(m)}, {s(T+6)}, {v(m)}")
        for i in range(16):
            e(f"v_fma_f32 {v(S+i)}, {v(S+i)}, {s(T+6)}, -{v(m)}")
        for i in range(4):
            e(f"v_fma_f32 {v(SM+i)}, {v(SM+i)}, {s(T+6)}, -{v(m)}")
        for i in range(16):
            e(f"v_exp_f32 {v(S+i)}, {v(S+i)}")
        for i in range(4):
            e(f"v_exp_f32 {v(SM+i)}, {v(SM+i)}")
        sm = t + 3
        e(f"v_add_f32 {v(sm)}, {v(S)}, {v(S+1)}")
        for i in range(2, 16):
            e(f"v_add_f32 {v(sm)}, {v(sm)}, {v(S+i)}")
        for i in range(4):
            e(f"v_add_f32 {v(sm)}, {v(sm)}, {v(SM+i)}")
        e(f"v_mov_b32 {v(t2)}, {v(sm)}")
        e(f"v_permlane32_swap_b32 {v(t2)}, {v(sm)}")
        e(f"v_add_f32 {v(sm)}, {v(sm)}, {v(t2)}")
        e(f"v_rcp_f32 {v(sm)}, {v(sm)}")
        PB = t + 4
        PB = (PB + 3) // 4 * 4
        for i in range(8):
            e(f"v_cvt_pk_bf16_f32 {v(PB+i)}, {v(S+2*i)}, {v(S+2*i+1)}")
        e(f"v_cvt_pk_bf16_f32 {v(PB+8)}, {v(SM)}, {v(SM+1)}")
        e(f"v_cvt_pk_bf16_f32 {v(PB+9)}, {v(SM+2)}, {v(SM+3)}")
        e("s_waitcnt vmcnt(0)")
        for c in range(2):
            for tl in range(4):
                e(f"v_mfma_f32_32x32x16_bf16 {v(O+16*tl,16)}, {v(VF+(tl*2+c)*4,4)}, {v(PB+4*c,4)}, {'0' if c == 0 else v(O+16*tl,16)}")
        for tl in range(4):
            e(f"v_mfma_f32_32x32x8bf16_1k {v(O+16*tl,16)}, {v(VM+2*tl,2)}, {v(PB+8,2)}, {v(O+16*tl,16)}")
        P = S
        for tl in range(4):
            Pb = S + (tl & 1) * 16 + 0
            d = O + 16*tl
            for i in range(16):
                e(f"v_mul_f32 {v(d+i)}, {v(d+i)}, {v(sm)}")
            for i in range(8):
                e(f"v_cvt_pk_bf16_f32 {v(Pb+i)}, {v(d+2*i)}, {v(d+2*i+1)}")
            for hq in range(2):
                e(f"v_permlane32_swap_b32 {v(Pb+hq*4+0)}, {v(Pb+hq*4+2)}")
                e(f"v_permlane32_swap_b32 {v(Pb+hq*4+1)}, {v(Pb+hq*4+3)}")
            for hq in range(2):
                e(f"buffer_store_dwordx4 {v(Pb+hq*4,4)}, {v(g.vQ)}, {s(g.sO,4)}, {s(T)} offen offset:{tl*64+hq*32}{aux}")

def xattn_kernel(name, ws):
    e = Asm()
    done = name + "_done"
    e("s_cmp_ge_u32 s2, 512")
    e(f"s_cbranch_scc1 {done}")
    load_ptr(e, 4, 'ws')
    e("v_and_b32 v1, 63, v0")
    e("v_lshrrev_b32 v2, 6, v0")
    e("v_readfirstlane_b32 s12, v2")
    xa = XA(sQ=20, sK=24, sVT=28, sKM=32, sVMT=36, sO=40, sSeg=13, sHead=14, sT=44, vLane=1)
    xa.setup(e)
    e("s_lshr_b32 s13, s2, 3")
    e("s_and_b32 s14, s2, 7")
    e("s_lshl_b32 s14, s14, 2")
    e("s_add_u32 s14, s14, s12")
    e("s_waitcnt lgkmcnt(0)")
    for nm, sd in (('q', 20), ('k', 24), ('vT', 28), ('km', 32), ('vmT', 36), ('o', 40)):
        srd(e, sd, 4, ws.size(nm), ws.o(nm))
    xa.task(e, 32)
    e("s_waitcnt vmcnt(0)")
    e.label(done)
    e("s_endpgm")
    return dict(name=name, grid=512, block=256, lds=0, lines=e.lines, vgprs=232)
```

```python
import sys, json, argparse
from common import *
from base2 import make_ws, make_list
from chain import chain_kernel
ap = argparse.ArgumentParser()
ap.add_argument("out")
ap.add_argument("--instr", action="store_true")
ap.add_argument("--slow", action="store_true")
ap.add_argument("--spoll", type=int, default=6)
ap.add_argument("--dumpcu", type=int, default=0)
ap.add_argument("--nsteps", type=int, default=None)
ap.add_argument("--final", action="store_true")
args = ap.parse_args()
ws = make_ws()
ch = chain_kernel(ws, instr=args.instr, force_slow=args.slow, spoll_n=args.spoll, dump_cu=args.dumpcu, nsteps=args.nsteps)
ks = make_list(ws, ch)
if args.final:
    ref = open(f"cdna_kernels/{NAME}.s.ref").read().split('\n')
    hdr = []
    for ln in ref:
        if ln.startswith('; Override launch'): break
        hdr.append(ln)
else:
    hdr = ["; generated"]
txt, prob = build(ks, hdr)
for p in prob: print("EDGE HAZARD:", p)
open(args.out, 'w').write(txt)
json.dump(ws.lay, open('layout.json', 'w'))
```
